```python
import torch

def _softmax(x, axis=-1):
    return torch.softmax(x, dim=axis)
def _gelu(x):
    return torch.nn.functional.gelu(x, approximate="tanh")
def _silu(x):
    return torch.nn.functional.silu(x)
def _sigmoid(x):
    return torch.sigmoid(x)
def _layernorm(x, axis=-1, eps=1e-5):
    m = x.mean(dim=axis, keepdim=True)
    v = x.var(dim=axis, keepdim=True, unbiased=False)
    return (x - m) / torch.sqrt(v + eps)
def _scatter_add(tgt, idx, src, axis=0):
    return tgt.clone().index_add_(axis, idx, src)
def _segment_sum(src, seg, n):
    out = torch.zeros((n,) + src.shape[1:], dtype=src.dtype)
    return out.index_add_(0, seg, src)
def _pad(x, pw):
    flat = tuple(v for pair in reversed(pw) for v in pair)
    return torch.nn.functional.pad(x, flat)

kernel_name = 'sequential_preLN__mha_block__moe_arch_mod__prompt'

def setup_inputs():

    _w = (lambda a: (lambda t: t.to(torch.bfloat16) if t.is_floating_point() else t)(torch.as_tensor(a)))
    def _A_setup():
        B, S, D, H = 1, 2048, 640, 32
        return {
            "x": _w((lambda *s: torch.randn(*s, dtype=torch.bfloat16) * 0.05)(B, S, D)),
            "wqkv": _w((lambda *s: torch.randn(*s, dtype=torch.bfloat16) * 0.05)(D, 3 * D)),
            "wo": _w((lambda *s: torch.randn(*s, dtype=torch.bfloat16) * 0.05)(D, D)),
        }
    _A_in = _A_setup()

    def _B_setup():
        B, S, D, F, C = 1, 2048, 640, 1728, 1
        return {
            "x": _w((lambda *s: torch.randn(*s, dtype=torch.bfloat16) * 0.05)(B, S, D)),
            "w_r": _w((lambda *s: torch.randn(*s, dtype=torch.bfloat16) * 0.05)(D)),
            "w_gate": _w((lambda *s: torch.randn(*s, dtype=torch.bfloat16) * 0.05)(D, F)),
            "w_up": _w((lambda *s: torch.randn(*s, dtype=torch.bfloat16) * 0.05)(D, F)),
            "w_down": _w((lambda *s: torch.randn(*s, dtype=torch.bfloat16) * 0.05)(F, D)),
        }
    _B_in = _B_setup()

    return {
        "A_x": _A_in["x"],
        "A_wqkv": _A_in["wqkv"],
        "A_wo": _A_in["wo"],
        "B_x": _B_in["x"],
        "B_w_r": _B_in["w_r"],
        "B_w_gate": _B_in["w_gate"],
        "B_w_up": _B_in["w_up"],
        "B_w_down": _B_in["w_down"],
    }

def reference(A_x, A_wqkv, A_wo, B_x, B_w_r, B_w_gate, B_w_up, B_w_down):
    def _A_ref(x, wqkv, wo):
        B, S, D = x.shape
        H = 32
        Dh = D // H
        qkv = (lambda x, *d: x.permute(*d))((x @ wqkv).reshape(B, S, 3, H, Dh), 2, 0, 3, 1, 4)
        q, k, v = qkv[0], qkv[1], qkv[2]
        scores = torch.einsum("bhqd,bhkd->bhqk", q, k) * (Dh ** -0.5)
        p = _softmax(scores, axis=-1)
        o = torch.einsum("bhqk,bhkd->bhqd", p, v)
        return (lambda x, *d: x.permute(*d))(o, 0, 2, 1, 3).reshape(B, S, D) @ wo

    def _B_ref(x, w_r, w_gate, w_up, w_down):
        B, S, D = x.shape
        C = 1
        r = x @ w_r
        idx = torch.argsort(-r, axis=-1)[:, :C]
        idx_e = (lambda x, n, axis: torch.repeat_interleave(x, n, dim=axis))(idx.reshape(B, C, 1), D, axis=2)
        x_sel = (lambda x, i, axis: torch.take_along_dim(x, i, dim=axis))(x, idx_e, axis=1)
        g = _silu(x_sel @ w_gate)
        u = x_sel @ w_up
        y = (g * u) @ w_down
        r_sel = _sigmoid((lambda x, i, axis: torch.take_along_dim(x, i, dim=axis))(r, idx, axis=1))
        y = y * r_sel.reshape(B, C, 1)
        b_off = (torch.arange(B) * S).reshape(B, 1)
        flat_idx = (idx + b_off).reshape(B * C)
        zero = (x * 0.0).reshape(B * S, D)
        upd = _scatter_add(zero, flat_idx, y.reshape(B * C, D), axis=0)
        return x + upd.reshape(B, S, D)

    x = A_x
    h = x + _A_ref(_layernorm(x, axis=-1), A_wqkv, A_wo)
    h2 = h + _B_ref(_layernorm(h, axis=-1), B_w_r, B_w_gate, B_w_up, B_w_down)
    return h2
```

```python
import re,os
PROF=bool(os.environ.get('PROF'))
PROFC=os.environ.get('PROF')=='cyc'
PROFOFF=0x1100000

TRANS = ('v_exp_f32','v_log_f32','v_rcp_f32','v_rsq_f32','v_sqrt_f32','v_sin_f32','v_cos_f32','v_rcp_iflag_f32','v_exp_f16','v_rcp_f16')

def split_ops(s):
    out=[];depth=0;cur=''
    for ch in s:
        if ch=='[':depth+=1
        if ch==']':depth-=1
        if ch==',' and depth==0:
            out.append(cur.strip());cur=''
        else: cur+=ch
    if cur.strip(): out.append(cur.strip())
    return out

RE_REG=re.compile(r'^(-|\|)?\|?([vsa])(\d+)\|?$')
RE_RNG=re.compile(r'^(-)?\|?([vsa])\[(\d+):(\d+)\]\|?$')
def regs_of(op):
    op=op.strip()
    tok=op.split()[0] if op else ''
    if tok.startswith('neg(') or tok.startswith('abs('):
        tok=tok[4:-1]
    m=RE_REG.match(tok)
    if m: return {(m.group(2),int(m.group(3)))}
    m=RE_RNG.match(tok)
    if m: return {(m.group(2),i) for i in range(int(m.group(3)),int(m.group(4))+1)}
    if tok=='vcc': return {('s','vcc_lo'),('s','vcc_hi')}
    if tok in('vcc_lo','vcc_hi'): return {('s',tok)}
    if tok=='exec': return {('s','exec_lo'),('s','exec_hi')}
    if tok in('exec_lo','exec_hi'): return {('s',tok)}
    if tok=='m0': return {('s','m0')}
    return set()

MFMA_PASS={'32x32x16':8,'32x32x8':8,'16x16x32':4,'16x16x16':4,'32x32x4_2b':16,'16x16x4_4b':8,'4x4x4_16b':2}

class Ins:
    __slots__=('text','op','ops','kind','dst','src','passes','A','B','C','D','trans','dpp','lds_dma','wide_store','nop','label','target','uncond','opsel','mods')
    def __init__(s,text):
        s.text=text
        t=text.split(';')[0].strip()
        s.label=None;s.target=None;s.uncond=False
        s.kind='none';s.dst=set();s.src=set();s.passes=0;s.trans=False;s.dpp=False;s.lds_dma=False;s.wide_store=False;s.nop=0;s.opsel=False
        s.A=s.B=s.C=s.D=set()
        s.op='';s.ops=[];s.mods=''
        if not t or t.startswith('.'):
            return
        if t.endswith(':'):
            s.label=t[:-1];s.kind='label';return
        p=t.split(None,1)
        op=p[0];s.op=op
        rest=p[1] if len(p)>1 else ''
        ops=split_ops(rest)
        s.ops=ops
        s.mods=rest
        R=[regs_of(o) for o in ops]
        base=re.sub(r'_(e32|e64|dpp|sdwa)$','',op)
        if op.startswith('v_mfma'):
            s.kind='mfma'
            for k,v in MFMA_PASS.items():
                if k in op: s.passes=v
            assert s.passes, text
            s.D,s.A,s.B,s.C=R[0],R[1],R[2],R[3]
            s.dst=set(s.D);s.src=s.A|s.B|s.C
        elif op.startswith('v_'):
            s.kind='valu'
            s.trans=base in TRANS
            s.dpp=('row_' in rest or 'quad_perm' in rest or 'wave_' in rest or op.endswith('_dpp'))
            s.opsel=('op_sel' in rest and not base.startswith('v_pk')) or 'dst_sel' in rest
            s.dst=set(R[0]);src=set()
            k=1
            if base in('v_add_co_u32','v_sub_co_u32','v_addc_co_u32','v_subb_co_u32','v_subrev_co_u32','v_div_scale_f32','v_mad_u64_u32'):
                s.dst|=R[1];k=2
            for r in R[k:]: src|=r
            if base.startswith('v_cndmask') and len(ops)==3: src|=regs_of('vcc')
            if base in('v_fmac_f32','v_mac_f32','v_writelane_b32','v_dot2c_f32_bf16','v_pk_fmac_f16') or s.dpp or 'UNUSED_PRESERVE' in rest: src|=R[0]
            if base.startswith('v_permlane') and 'swap' in base:
                s.dst|=R[1];src|=R[0]
            if base.startswith('v_cmpx'): s.dst|=regs_of('exec')
            if base=='v_div_fmas_f32': src|=regs_of('vcc')
            if base=='v_nop': s.dst=set()
            s.src=src
        elif op.startswith('ds_'):
            s.kind='ds'
            if op.startswith('ds_read') or op.startswith('ds_bpermute') or op.startswith('ds_permute') or op.startswith('ds_swizzle') or '_rtn' in op:
                s.dst=set(R[0])
                for r in R[1:]: s.src|=r
            else:
                for r in R: s.src|=r
        elif op.startswith('buffer_') or op.startswith('global_'):
            s.kind='vmem'
            toks=rest.replace(',',' ').split()
            if 'lds' in toks or '_lds_' in op:
                s.lds_dma=True
                for r in R: s.src|=r
                s.src|={('s','m0')}
            elif '_load' in op:
                s.dst=set(R[0])
                for r in R[1:]: s.src|=r
            elif 'atomic' in op:
                for r in R: s.src|=r
                if 'sc0' in toks: s.dst=set(R[0])
            elif '_store' in op:
                for r in R: s.src|=r
                if op.endswith('x3') or op.endswith('x4'):
                    s.wide_store=True
                    s.D=R[0] if op.startswith('buffer') else R[1]
        elif op.startswith('s_'):
            if op.startswith('s_load') or op.startswith('s_buffer_load') or op in('s_memtime','s_memrealtime'):
                s.kind='smem';s.dst=set(R[0])
                for r in R[1:]: s.src|=r
            elif op=='s_nop':
                s.kind='nop';s.nop=int(ops[0],0)+1
            elif op=='s_waitcnt': s.kind='wait'
            elif op.startswith('s_cbranch') or op=='s_branch':
                s.kind='branch';s.target=ops[0];s.uncond=(op=='s_branch')
                if 'vcc' in op: s.src=regs_of('vcc')
                if 'exec' in op: s.src=regs_of('exec')
            elif op=='s_endpgm': s.kind='end';s.uncond=True
            elif op in('s_barrier','s_setprio','s_sleep','s_sethalt','s_setreg_b32','s_setreg_imm32_b32'): s.kind='sop'
            elif op.startswith('s_cmp') or op.startswith('s_bitcmp'):
                s.kind='salu'
                for r in R: s.src|=r
            else:
                s.kind='salu';s.dst=set(R[0])
                for r in R[1:]: s.src|=r
                if 'saveexec' in op:
                    s.dst|=regs_of('exec');s.src|=regs_of('exec')
                if op in('s_cmov_b32','s_cmov_b64','s_bitset1_b32','s_bitset0_b32','s_addk_i32','s_mulk_i32'): s.src|=R[0]
        else:
            raise ValueError('unknown instruction: '+text)
    @property
    def real(s): return s.kind not in('none','label')
    def states(s):
        if s.kind=='nop': return s.nop
        return 1 if s.real else 0

def isv(r): return r[0] in 'va'
def vset(S): return {r for r in S if isv(r)}
def sset(S): return {r for r in S if r[0]=='s'}
EXEC=regs_of('exec');VCC=regs_of('vcc')

def need(p,c):
    n=0
    T={2:0,4:1,8:2,16:3}
    if p.kind=='valu':
        pv=vset(p.dst);ps=sset(p.dst)
        if c.kind=='mfma':
            if pv&c.src: n=max(n,2)
            if ps&EXEC: n=max(n,4)
        if c.kind=='valu':
            if p.trans and not c.trans and (pv&c.src): n=max(n,1)
            if p.trans and c.trans and (pv&c.src): n=max(n,1)
            if p.opsel and (pv&(c.src|c.dst)): n=max(n,1)
            if c.dpp and (pv&c.src): n=max(n,2)
            if c.dpp and (ps&EXEC): n=max(n,5)
            if c.op.startswith('v_readlane') or c.op.startswith('v_readfirstlane'):
                if pv&c.src: n=max(n,1)
                if ps&EXEC: n=max(n,4)
            if c.op.startswith('v_readlane') or c.op.startswith('v_writelane'):
                if ps&regs_of(c.ops[-1]): n=max(n,4)
                if ps&EXEC: n=max(n,4)
            if c.op.startswith('v_permlane'):
                if pv&c.src: n=max(n,2)
                if ps&EXEC: n=max(n,4)
            if ps&c.src: n=max(n,2)
            if c.op.startswith('v_div_fmas') and (ps&VCC): n=max(n,4)
            if p.op.startswith('v_dot') and (pv&(c.src|c.dst)): n=max(n,3)
        if c.kind=='vmem' and (ps&c.src): n=max(n,5)
        if c.kind=='branch' and (ps&c.src): n=max(n,5)
        if c.kind in('salu','smem') and (ps&c.src): n=max(n,1)
    elif p.kind=='mfma':
        i=T[p.passes]
        if c.kind=='mfma':
            if p.D&c.C:
                if p.D==c.C and p.passes==c.passes: n=max(n,[2,0,0,0][i])
                else: n=max(n,[4,6,10,18][i])
            if p.D&(c.A|c.B): n=max(n,[5,8,12,20][i])
            if (p.D&c.D) and not (p.D&c.C): n=max(n,[5,8,12,20][i])
        elif c.kind in('valu','vmem','ds'):
            if p.D&(c.src|c.dst): n=max(n,[5,8,12,20][i])
            if c.kind=='valu' and (p.C&c.dst): n=max(n,[1,3,7,15][i])
            if c.kind in('vmem','ds') and (p.C&c.dst): n=max(n,[1,3,7,15][i])
    elif p.kind=='salu':
        if ('s','m0') in p.dst and (c.lds_dma or 'addtid' in c.op): n=max(n,1)
    elif p.kind=='vmem':
        if p.wide_store and (p.D&c.dst) and c.kind!='vmem': n=max(n,2)
    return n

class Kernel:
    def __init__(s,name,vgpr=256,agpr=0,sgpr=102):
        s.name=name;s.lines=[];s.vgpr=vgpr;s.agpr=agpr;s.sgpr=sgpr;s.nlab=0
    def __call__(s,text):
        for l in text.split('\n'):
            l=l.strip()
            if l: s.lines.append(l)
    def prof_start(s):
        if PROF: s('s_memrealtime s[96:97]\ns_memtime s[78:79]')
    def prof_mark(s,i):
        if PROF: s(f's_mem{"" if PROFC else "real"}time s[{80+2*i}:{81+2*i}]')
    def prof_end(s,kid,srd,vt):
        if not PROF: return
        s('s_waitcnt vmcnt(0)\ns_memrealtime s[98:99]\ns_memtime s[76:77]\ns_waitcnt lgkmcnt(0)\ns_sub_u32 s76, s76, s78')
        if PROFC:
            for i in range(8): s(f's_sub_u32 s{80+2*i}, s{80+2*i}, s78')
        s(f's_lshl_b32 s100, s2, 10\ns_add_u32 s100, s100, {PROFOFF+kid*0x40000}')
        s(f's_mov_b64 exec, -1\nv_lshrrev_b32 v{vt}, 6, v{vt+2}\nv_lshlrev_b32 v{vt}, 6, v{vt}\nv_add_u32 v{vt}, s100, v{vt}')
        for i,r in enumerate([96,98,80,82,84,86,88,90,92,94,76]):
            s(f'v_mov_b32 v{vt+1}, s{r}\nbuffer_store_dword v{vt+1}, v{vt}, s[{srd}:{srd+3}], 0 offen offset:{4*i}')
    def newlabel(s,p='L'):
        s.nlab+=1
        return f'{s.name}_{p}{s.nlab}'
    def label(s,l): s.lines.append(l+':')
    def fix(s,verbose=False):
        ins=[Ins(l) for l in s.lines]
        total=0
        srcs={}
        for x in ins:
            if x.kind=='branch': srcs.setdefault(x.target,[]).append(x)
        names={x.label for x in ins if x.label}
        for t in srcs: assert t in names,t
        changed=True
        while changed:
            changed=False
            i=0
            while i<len(ins):
                c=ins[i]
                if c.real and c.kind not in('nop','wait','sop','end'):
                    worst=0
                    stack=[(i-1,0)]
                    seen=set()
                    while stack:
                        j,d=stack.pop()
                        while j>=0 and d<21:
                            p=ins[j]
                            if p.label:
                                if (j,d) in seen: break
                                seen.add((j,d))
                                for bsrc in srcs.get(p.label,[]):
                                    stack.append((next(q for q,y in enumerate(ins) if y is bsrc),d))
                                k=j-1
                                while k>=0 and not ins[k].real and not ins[k].label: k-=1
                                if k>=0 and ins[k].real and ins[k].uncond: break
                                j-=1;continue
                            if p.real:
                                n=need(p,c)
                                if n-d>worst: worst=n-d
                                d+=p.states()
                            j-=1
                    if worst>0:
                        k=worst
                        while k>0:
                            q=min(k,16)
                            ins.insert(i,Ins(f's_nop {q-1}'));k-=q;i+=1
                        total+=worst
                        if verbose: print(f'[{s.name}] nop {worst} before: {c.text}')
                        changed=True
                i+=1
        s.ins=ins
        s.nops=total
        s.lint()
        return ins
    def lint(s):
        vm=[];lg=[]
        errs=0
        for idx,x in enumerate(s.ins):
            if not x.real: continue
            if x.kind=='wait':
                m=re.search(r'vmcnt\((\d+)\)',x.text)
                if m:
                    n=int(m.group(1));assert n<=63,x.text
                    while len(vm)>n: vm.pop(0)
                m=re.search(r'lgkmcnt\((\d+)\)',x.text)
                if m:
                    n=int(m.group(1));assert n<=15,x.text
                    if n==0: lg=[]
                    elif not any(k=='smem' for k,_,_ in lg):
                        while len(lg)>n: lg.pop(0)
                continue
            if x.uncond:
                vm=[];lg=[];continue
            touched=x.src|x.dst
            for q in (vm,lg):
                for k,d,t in q:
                    if d&touched:
                        if x.kind==k and not (d&x.src) and k!='smem': continue
                        if errs<8: print(f'LINT[{s.name}] line {idx}: "{x.text}" touches pending result of "{t}"')
                        errs+=1
            if x.kind=='vmem': vm.append(('vmem',x.dst,x.text))
            elif x.kind=='ds': lg.append(('ds',x.dst,x.text))
            elif x.kind=='smem': lg.append(('smem',x.dst,x.text))
        mv=-1;ms=-1;ma=-1
        for x in s.ins:
            for r in x.src|x.dst:
                if isinstance(r[1],int):
                    if r[0]=='v': mv=max(mv,r[1])
                    if r[0]=='s': ms=max(ms,r[1])
                    if r[0]=='a': ma=max(ma,r[1])
        s.maxv=mv;s.maxs=ms;s.maxa=ma
        assert mv<s.vgpr,(s.name,mv);assert ms<s.sgpr,(s.name,ms)
        if errs: raise SystemExit(f'lint errors in {s.name}')
    def text(s):
        o=[f'.globl {s.name}',f'.p2align 8',f'.type {s.name},@function',f'{s.name}:']
        for x in s.ins:
            o.append(x.text if x.label else '  '+x.text)
        return '\n'.join(o)+'\n'
    def desc(s):
        acc=(s.vgpr+3)//4*4
        return f""".p2align 6
.amdhsa_kernel {s.name}
  .amdhsa_next_free_vgpr {acc+s.agpr if s.agpr else s.vgpr}
  .amdhsa_next_free_sgpr {s.sgpr}
  .amdhsa_accum_offset {acc}
  .amdhsa_group_segment_fixed_size 0
  .amdhsa_kernarg_size 88
  .amdhsa_user_sgpr_count 2
  .amdhsa_user_sgpr_kernarg_segment_ptr 1
  .amdhsa_system_sgpr_workgroup_id_x 1
.end_amdhsa_kernel
"""

HEADER="""; Kernarg layout (88 bytes): x@0 wqkv@8 wo@16 B_x@24 w_r@32 w_gate@40 w_up@48 w_down@56 out@64 dbg@72 ws@80
"""
def build(kernels_launch, path):
    o=HEADER
    for k,g,b,l in kernels_launch:
        o+=f'; @launch kernel={k.name} grid=({g},1,1) block=({b},1,1) lds={l}\n'
    o+='.amdgcn_target "amdgcn-amd-amdhsa--gfx950"\n.text\n'
    seen=[]
    for k,_,_,_ in kernels_launch:
        if k not in seen: seen.append(k)
    for k in seen: o+=k.text()
    o+='.section .rodata,"a"\n'
    for k in seen: o+=k.desc()
    open(path,'w').write(o)
```

```python
from asmlib import Kernel,PROF
from layout import *
import os
EXP=os.environ.get('EXP','')

def srd(k,d,b,n):
    k(f's_mov_b32 s{d}, s{b}\ns_mov_b32 s{d+1}, s{b+1}\ns_mov_b32 s{d+2}, {n}\ns_mov_b32 s{d+3}, 0x20000')

def gen_k1(zero_words=0):
    k=Kernel('k1_qkv_kernel',vgpr=160)
    ACC=[0,16]; XF=[32,36,40,136]; WF=[[44,48],[52,56],[60,64]]
    SX=68;SXX=70;CS=72;SEL=[76,80]
    U=84
    VXA=[144,145,146,147]; VWA=[[148,149,150,151],[152,153,154,155]]
    VOXA=156;VOXB=157;VOW=88;VST=90;LANE=98;TOK=99;HI=100
    T=104
    end=k.newlabel('end')
    k(f's_cmp_ge_u32 s2, 240\ns_cbranch_scc1 {end}')
    k.prof_start()
    k('v_mov_b32 v142, v0')
    k('s_load_dwordx4 s[4:7], s[0:1], 0\ns_load_dwordx2 s[8:9], s[0:1], 80')
    k('''s_and_b32 s3, s2, 7
    s_mul_i32 s3, s3, 30
    s_lshr_b32 s10, s2, 3
    s_add_u32 s3, s3, s10          ; t
    s_mul_i32 s10, s3, 1093
    s_lshr_b32 s10, s10, 16        ; g = t/60
    s_mul_i32 s11, s10, 60
    s_sub_u32 s11, s3, s11         ; u
    s_lshr_b32 s25, s11, 2         ; jt
    s_and_b32 s11, s11, 3
    s_lshl_b32 s24, s10, 2
    s_add_u32 s24, s24, s11        ; rb
    v_lshrrev_b32 v1, 6, v0
    v_and_b32 v98, 63, v0
    v_readfirstlane_b32 s26, v1    ; wave
    ''')
    k(f'''s_and_b32 s27, s26, 1       ; fw
    s_lshr_b32 s28, s26, 1         ; tw
    s_xor_b32 s29, s27, s28        ; perm
    s_mul_i32 s30, s28, 20480
    s_lshl_b32 s31, s27, 10
    s_add_u32 s30, s30, s31
    s_lshl_b32 s31, s26, 10
    s_add_u32 s31, s31, 81920
    s_add_u32 s34, s24, s25
    s_mul_i32 s35, s34, 26
    s_lshr_b32 s35, s35, 8
    s_mul_i32 s35, s35, 10
    s_sub_u32 s34, s34, s35        ; rot
    s_mul_i32 s36, s24, 163840
    s_lshl_b32 s37, s25, 8
    ''')
    k(f'''v_lshrrev_b32 v1, 3, v{LANE}          ; l/8
    s_lshl_b32 s3, s27, 3
    v_add_u32 v1, s3, v1                  ; rr
    v_lshrrev_b32 v2, 1, v1
    v_and_b32 v2, 7, v2                   ; swz
    v_and_b32 v3, 7, v{LANE}
    v_xor_b32 v2, v2, v3
    s_lshl_b32 s3, s28, 5
    v_add_u32 v1, s3, v1
    v_mul_u32_u24 v1, 1280, v1
    v_lshl_add_u32 v{VOXA}, v2, 4, v1
    v_add_u32 v{VOXB}, 20480, v{VOXA}
    v_lshrrev_b32 v1, 3, v{LANE}
    s_lshl_b32 s3, s26, 3
    v_add_u32 v1, s3, v1                  ; k row
    v_mul_u32_u24 v1, 3840, v1
    v_lshrrev_b32 v2, 2, v{LANE}
    v_and_b32 v2, 4, v2
    v_xor_b32 v2, v2, v3
    v_lshl_add_u32 v{VOW}, v2, 4, v1
    s_waitcnt lgkmcnt(0)''')
    srd(k,12,4,2621440); srd(k,16,6,2457600); srd(k,20,8,WS_BYTES)
    def dma(slot,part=None):
        P=[f"""s_lshl_b32 s32, s34, 7
        s_add_u32 s32, s32, s36
        s_mul_i32 s33, s34, 245760
        s_add_u32 s33, s33, s37
        s_add_u32 m0, s30, {slot*4096}
        s_add_u32 s34, s34, 1
        buffer_load_dwordx4 v{VOXA}, s[12:15], s32 offen lds""",
        f"""s_add_u32 m0, s31, {slot*8192}
        s_cmp_eq_u32 s34, 10
        buffer_load_dwordx4 v{VOW}, s[16:19], s33 offen lds
        s_cselect_b32 s34, 0, s34""",
        f"""s_add_u32 m0, s30, {slot*4096+2048}
        s_nop 0
        buffer_load_dwordx4 v{VOXB}, s[12:15], s32 offen lds""",
        f"""s_add_u32 m0, s31, {slot*8192+40960-128}
        s_nop 0
        buffer_load_dwordx4 v{VOW}, s[16:19], s33 offen offset:128 lds"""]
        if part is None:
            for p in P: k(p)
        else: k(P[part])
    for c in range(2): dma(c)
    k(f'''v_and_b32 v{TOK}, 31, v{LANE}
    v_lshrrev_b32 v{HI}, 5, v{LANE}
    v_lshrrev_b32 v1, 1, v{TOK}
    v_and_b32 v1, 7, v1
    v_xor_b32 v1, v1, v{HI}
    v_lshlrev_b32 v1, 4, v1
    v_lshl_add_u32 v1, v{TOK}, 7, v1
    s_mul_i32 s3, s28, 20480
    v_add_u32 v1, s3, v1''')
    for j in range(4):
        k(f's_xor_b32 s3, s29, {j}\ns_lshl_b32 s3, s3, 5\nv_xor_b32 v{VXA[j]}, s3, v1')
    k(f'''v_bfe_u32 v1, v{LANE}, 2, 2          ; r
    v_lshl_add_u32 v2, v{HI}, 3, v1           ; 8hi+r
    v_lshlrev_b32 v2, 7, v2
    v_lshrrev_b32 v1, 1, v1
    v_lshl_add_u32 v2, v1, 6, v2              ; (r>>1)*64
    v_bfe_u32 v1, v{LANE}, 4, 1
    v_lshl_add_u32 v2, v1, 5, v2
    v_and_b32 v1, 3, v{LANE}
    v_lshl_add_u32 v2, v1, 3, v2
    s_mul_i32 s3, s27, 40960
    s_add_u32 s3, s3, 81920
    v_add_u32 v2, s3, v2''')
    for j in range(4):
        k(f's_xor_b32 s3, s29, {j}\ns_lshl_b32 s3, s3, 11\nv_add_u32 v{VWA[0][j]}, s3, v2\nv_xor_b32 v{VWA[1][j]}, 64, v{VWA[0][j]}')
    k(f'''v_and_b32 v1, 15, v{LANE}
    v_bfe_u32 v2, v{LANE}, 4, 1
    v_mov_b32 v3, 0x3f803f80
    v_cmp_eq_u32 vcc, v1, v2
    v_add_u32 v2, 2, v2
    v_cndmask_b32 v{SEL[0]}, 0, v3, vcc
    v_cmp_eq_u32 vcc, v1, v2
    v_cmp_eq_u32 s[46:47], 1, v{HI}
    v_cndmask_b32 v{SEL[1]}, 0, v3, vcc
    s_lshl_b32 s38, s24, 2
    s_add_u32 s38, s38, s28''')
    for t in range(2):
        for i in range(1,4): k(f'v_mov_b32 v{SEL[t]+i}, v{SEL[t]}')
    for r in (SX,SX+1,SXX,SXX+1): k(f'v_mov_b32 v{r}, 0')
    vlab=k.newlabel('vpath')
    k(f's_cmp_ge_u32 s25, 10\ns_cbranch_scc1 {vlab}')

    def reads(n):
        c,j=n//4,n%4
        slot=c%5;x=XF[n%4];L=[]
        if 'nox' not in EXP: L.append(f'ds_read_b128 v[{x}:{x+3}], v{VXA[j]} offset:{slot*4096}')
        for t in range(2):
            w=WF[n%3][t]
            if 'now' in EXP: continue
            L.append(f'ds_read_b64_tr_b16 v[{w}:{w+1}], v{VWA[t][j]} offset:{slot*8192}')
            L.append(f'ds_read_b64_tr_b16 v[{w+2}:{w+3}], v{VWA[t][j]} offset:{slot*8192+512}')
        return L
    def body(isv):
        def mm(t,n,first):
            a=ACC[t];w=WF[n%3][t];x=XF[n%4]
            A,B=(x,w) if isv else (w,x)
            k(f'v_mfma_f32_32x32x16_bf16 v[{a}:{a+15}], v[{A}:{A+3}], v[{B}:{B+3}], '+('0' if first else f'v[{a}:{a+15}]'))
        def xstat(x,i):
            u=U+2*(i%2)
            k(f'''v_lshlrev_b32 v{u}, 16, v{x+i}
            v_and_b32 v{u+1}, 0xffff0000, v{x+i}
            v_fmac_f32 v{SXX}, v{u}, v{u}
            v_add_f32 v{SX}, v{SX}, v{u}
            v_fmac_f32 v{SXX+1}, v{u+1}, v{u+1}
            v_add_f32 v{SX+1}, v{SX+1}, v{u+1}''')
        def csum(t,b,first):
            w=WF[b][t]
            k(f'v_mfma_f32_16x16x32_bf16 v[{CS}:{CS+3}], v[{SEL[t]}:{SEL[t]+3}], v[{w}:{w+3}], '+('0' if first else f'v[{CS}:{CS+3}]'))
        addr(isv)
        sched={}
        q=[(c,p) for c in (2,3,4) for p in range(4)]
        for n in range(6): sched[n]=q[2*n:2*n+2]
        for c in range(5,10):
            for p in range(4): sched.setdefault(4*(c-4)+2+p,[]).append((c,p))
        issued=8
        k.prof_mark(0)
        k('s_waitcnt vmcnt(4) lgkmcnt(0)\ns_barrier')
        k.prof_mark(1)
        k('s_waitcnt lgkmcnt(0)')
        for l in reads(0)+reads(1): k(l)
        nr=len(reads(0))
        for c in range(10):
            for j in range(4):
                n=4*c+j;b=n%3
                R=reads(n+2) if n+2<40 else []
                if n==39:
                    k('s_waitcnt lgkmcnt(0)\ns_barrier')
                    R=[f'ds_read_b128 v[{T}:{T+3}], v{T+30}',f'ds_read_b128 v[{T+4}:{T+7}], v{T+30} offset:2048',f'ds_read_b128 v[{T+8}:{T+11}], v{T+31} offset:4096']
                elif j==2 and c<9:
                    k(f's_waitcnt vmcnt({issued-4*(c+2)}) lgkmcnt({nr})\ns_barrier')
                    if PROF and c in (1,4,6):
                        k('s_waitcnt lgkmcnt(0)'); k.prof_mark({1:3,4:4,6:5}[c]); k('s_waitcnt lgkmcnt(0)')
                else:
                    k(f's_waitcnt lgkmcnt({nr})')
                st='nostat' not in EXP
                x=XF[(n-(n%2))%4]
                last2=(n==38)
                mm(0,n,n==0)
                for l in R[:3]: k(l)
                if st and n<39: xstat(x,2*(n%2))
                if st and last2: xstat(x,1)
                if j==0: csum(0,b,n==0)
                mm(1,n,n==0)
                for l in R[3:]: k(l)
                if st and n<38: xstat(x,2*(n%2)+1)
                if st and last2: xstat(x,2); xstat(x,3)
                if j==0: csum(1,b,False)
                for (cc,p) in sched.get(n,[]):
                    dma(cc%5,p); issued+=1
                if last2:
                    k(f'''v_add_f32 v{SX}, v{SX}, v{SX+1}
                    v_add_f32 v{SXX}, v{SXX}, v{SXX+1}
                    s_mov_b64 exec, 0xffff
                    ds_write_b32 v{T+29}, v{CS} offset:4096
                    ds_write_b32 v{T+29}, v{CS+1} offset:{4096+256}
                    ds_write_b32 v{T+29}, v{CS+2} offset:{4096+512}
                    ds_write_b32 v{T+29}, v{CS+3} offset:{4096+768}
                    s_mov_b64 exec, -1
                    ds_write_b32 v{T+28}, v{SX}
                    ds_write_b32 v{T+28}, v{SXX} offset:2048''')
        if PROF:
            k('s_waitcnt lgkmcnt(0)'); k.prof_mark(2); k('s_waitcnt lgkmcnt(0)')
        k(f'''s_waitcnt lgkmcnt(1)
        v_add_f32 v{T}, v{T}, v{T+1}
        v_add_f32 v{T+2}, v{T+2}, v{T+3}
        v_add_f32 v{T+4}, v{T+4}, v{T+5}
        v_add_f32 v{T+6}, v{T+6}, v{T+7}
        v_add_f32 v{T}, v{T}, v{T+2}
        v_add_f32 v{T+4}, v{T+4}, v{T+6}
        s_mov_b32 s3, 0x3acccccd
        v_mul_f32 v{T}, s3, v{T}                  ; mean
        v_mul_f32 v{T+4}, s3, v{T+4}
        v_fma_f32 v{T+4}, -v{T}, v{T}, v{T+4}     ; var
        v_max_f32 v{T+4}, 0, v{T+4}
        v_cvt_pk_bf16_f32 v{T+4}, v{T+4}, v{T+4}
        v_cvt_pk_bf16_f32 v{T+2}, -v{T}, -v{T}    ; (-m,-m)
        v_and_b32 v{T+4}, 0xffff0000, v{T+4}
        v_add_f32 v{T+4}, 0x3727c5ac, v{T+4}
        v_cndmask_b32 v{T+16}, 0, v{T+2}, s[46:47]
        v_cndmask_b32 v{T+2}, v{T+2}, 0, s[46:47]
        v_cvt_pk_bf16_f32 v{T+4}, v{T+4}, v{T+4}
        v_and_b32 v{T+3}, 0xffff, v{T+2}
        v_and_b32 v{T+17}, 0xffff, v{T+16}
        v_and_b32 v{T+4}, 0xffff0000, v{T+4}
        v_sqrt_f32 v{T+4}, v{T+4}
        s_waitcnt lgkmcnt(0)
        v_cvt_pk_bf16_f32 v{T+4}, v{T+4}, v{T+4}
        v_and_b32 v{T+4}, 0xffff0000, v{T+4}
        v_rcp_f32 v{T+4}, v{T+4}                  ; rinv
        s_mov_b32 s3, 0x07060302''')
        q=T+8
        k(f'''v_add_f32 v{q}, v{q}, v{q+1}
        v_add_f32 v{q+2}, v{q+2}, v{q+3}
        v_add_f32 v{q}, v{q}, v{q+2}
        v_and_b32 v{q+1}, 0xffff0000, v{q}
        v_sub_f32 v{q+1}, v{q}, v{q+1}
        v_and_b32 v{q+2}, 0xffff0000, v{q+1}
        v_sub_f32 v{q+2}, v{q+1}, v{q+2}
        v_perm_b32 v{q+4}, v{q+1}, v{q}, s3
        v_cvt_pk_bf16_f32 v{q+5}, v{q+2}, 0''')
        if isv:
            k(f'''ds_write_b32 v{T+27}, v{T+4} offset:8192
            s_waitcnt lgkmcnt(0)''')
            for j in range(4):
                k(f'ds_read_b128 v[{XF[0]+4*j}:{XF[0]+4*j+3}], v{T+26} offset:{8192+32*j}')
        else:
            k(f'v_mul_f32 v{T+4}, s39, v{T+4}')
        for t in range(2):
            q=T+12;a=ACC[t];nm=[T+2,T+16][t]
            A,B=(nm,q) if isv else (q,nm)
            k(f'v_mfma_f32_32x32x8_bf16 v[{a}:{a+15}], v[{A}:{A+1}], v[{B}:{B+1}], v[{a}:{a+15}]')
        if isv: k('s_waitcnt lgkmcnt(0)')
        for t in range(2):
            a=ACC[t]
            for i in range(16):
                k(f'v_mul_f32 v{a+i}, '+(f'v{XF[0]+i}' if isv else f'v{T+4}')+f', v{a+i}')
            for i in range(8):
                k(f'v_cvt_pk_bf16_f32 v{a+i}, v{a+2*i}, v{a+2*i+1}')
            if isv:
                for s in range(2):
                    k(f'buffer_store_dwordx4 v[{a+4*s}:{a+4*s+3}], v{VST+t}, s[20:23], 0 offen offset:{640*s}')
            else:
                for j in range(4):
                    k(f'buffer_store_dwordx2 v[{a+2*j}:{a+2*j+1}], v{VST+4*t+j}, s[20:23], 0 offen')
        k.prof_end(0,20,140)
        k('s_endpgm')
    def addr(isv):
        k(f'''s_lshl_b32 s3, s28, 5
        v_add_u32 v{T}, s3, v{TOK}
        v_lshlrev_b32 v{T+30}, 4, v{T}
        v_lshl_add_u32 v{T+28}, v{HI}, 2, v{T+30}
        s_lshl_b32 s3, s27, 3
        v_add_u32 v{T+28}, s3, v{T+28}
        s_lshl_b32 s3, s27, 6
        v_add_u32 v{T}, s3, v{LANE}
        v_lshlrev_b32 v{T+31}, 4, v{T}
        s_lshl_b32 s3, s28, 2
        v_add_u32 v{T+29}, s3, v{T+31}''')
        if isv:
            k(f'''s_lshl_b32 s3, s26, 7
            v_lshl_add_u32 v{T+27}, v{TOK}, 2, s3
            v_lshl_add_u32 v{T+26}, v{HI}, 4, s3
            s_sub_u32 s3, s25, 10
            s_lshl_b32 s3, s3, 7
            s_lshl_b32 s10, s27, 6
            s_add_u32 s3, s3, s10
            s_mul_i32 s10, s38, 2560
            s_add_u32 s10, s10, {KVOFF+1280}
            v_mul_u32_u24 v{T+2}, 320, v{HI}
            v_add_u32 v{T+2}, s10, v{T+2}
            s_mov_b32 s11, {163840-320}''')
            for t in range(2):
                k(f'''v_add_u32 v{T}, s3, v{TOK}
                v_mul_u32_u24 v{T+1}, 3277, v{T}
                v_lshrrev_b32 v{T+1}, 16, v{T+1}         ; head
                v_lshl_add_u32 v{T}, v{T}, 4, v{T+2}
                v_mad_u32_u24 v{VST+t}, v{T+1}, s11, v{T}
                s_add_u32 s3, s3, 32''')
        else:
            k(f'''s_cmp_ge_u32 s25, 5
            s_cselect_b32 s3, 5, 0
            s_mov_b32 s10, 1280
            s_cselect_b32 s10, 2560, s10
            s_mov_b32 s11, 81920
            s_cselect_b32 s11, 163840, s11
            s_cselect_b32 s48, {KVOFF}, {QOFF}
            s_cselect_b32 s39, 1.0, 0x3ea52b5c
            s_sub_u32 s3, s25, s3                      ; jt%5
            s_mul_i32 s10, s10, s38
            s_add_u32 s48, s48, s10
            s_lshl_b32 s3, s3, 5
            s_lshl_b32 s10, s27, 4
            s_add_u32 s3, s3, s10
            v_add_u32 v{T}, s3, v{HI}                  ; c0
            v_lshlrev_b32 v{T+5}, 4, v{TOK}
            v_lshlrev_b32 v{T+6}, 3, v{TOK}
            v_add_u32 v{T+6}, 1024, v{T+6}''')
            for i in range(8):
                k(f'''v_mul_u32_u24 v{T+1}, 205, v{T}
                v_lshrrev_b32 v{T+1}, 10, v{T+1}           ; head
                v_mul_u32_u24 v{T+2}, 5, v{T+1}
                v_sub_u32 v{T+2}, v{T}, v{T+2}             ; sub
                v_and_b32 v{T+3}, 1, v{T+2}
                v_lshl_add_u32 v{T+3}, v{T+3}, 9, v{T+5}
                v_lshrrev_b32 v{T+4}, 1, v{T+2}
                v_lshl_add_u32 v{T+3}, v{T+4}, 3, v{T+3}
                v_cmp_eq_u32 vcc, 4, v{T+2}
                v_mul_u32_u24 v{T+1}, s11, v{T+1}
                v_add_u32 v{T}, 2, v{T}
                v_cndmask_b32 v{T+3}, v{T+3}, v{T+6}, vcc
                v_add3_u32 v{VST+i}, v{T+1}, v{T+3}, s48''')
    body(False)
    k.label(vlab)
    body(True)
    k.label(end)
    k('s_endpgm')
    return k
```

```python
from asmlib import Kernel,PROF
from layout import *
from k1 import srd
import os
EXP=os.environ.get('EXP','')

NPRE=int(os.environ.get('NPRE','4'))
def gen_k2():
    k=Kernel('k2_attn_kernel',vgpr=208)
    S=[0,32];P=64;O=80;KA=96;KB=100;KT=104;V=[108,124]
    QM=140;QT=144;AK=[146,147,148];AT=[149,150,151];AV=[152,153,154]
    LANE=155;TOK=156;HI=157;VD=158;VO=159;VOT=160;T=164;C=176
    end=k.newlabel('end')
    k(f's_cmp_ge_u32 s2, 256\ns_cbranch_scc1 {end}')
    k.prof_start()
    k('s_load_dwordx2 s[8:9], s[0:1], 80')
    k(f'''v_mov_b32 v202, v0
    v_lshrrev_b32 v1, 6, v0
    v_and_b32 v{LANE}, 63, v0
    v_readfirstlane_b32 s26, v1        ; wave
    s_and_b32 s3, s2, 7
    s_lshl_b32 s3, s3, 2
    s_bfe_u32 s24, s2, 0x20003
    s_add_u32 s24, s24, s3             ; head
    s_lshr_b32 s25, s2, 5              ; qb
    v_lshlrev_b32 v{VD}, 4, v{LANE}
    s_mul_i32 s30, s24, 163840
    s_add_u32 s30, s30, {KVOFF}
    s_lshl_b32 s31, s26, 10
    s_mul_i32 s32, s25, 20480
    s_add_u32 s32, s32, s31
    s_lshl_b32 s27, s25, 3
    s_add_u32 s27, s27, s26            ; q tile T
    s_mul_i32 s33, s24, 81920
    s_mul_i32 s34, s27, 1280
    s_add_u32 s33, s33, s34            ; q offset
    v_and_b32 v{TOK}, 31, v{LANE}
    v_lshlrev_b32 v1, 3, v{TOK}
    s_waitcnt lgkmcnt(0)''')
    srd(k,20,8,WS_BYTES)
    k(f'''buffer_load_dwordx4 v[{QM}:{QM+3}], v{VD}, s[20:23], s33 offen
    buffer_load_dwordx2 v[{QT}:{QT+1}], v1, s[20:23], s33 offen offset:1024''')
    rounds=[0]
    def dmaL():
        n=rounds[0];rounds[0]+=1
        return [f's_add_u32 s35, s30, s32',f's_add_u32 m0, s31, {8192*n}','s_add_u32 s32, s32, 8192',
        f'buffer_load_dwordx4 v{VD}, s[20:23], s35 offen lds','s_sub_u32 s34, s32, 163840','s_cselect_b32 s32, s32, s34']
    def dma():
        for l in dmaL(): k(l)
    for n in range(NPRE): dma()
    for n in range(NPRE,20):
        k(f's_add_u32 s{50+n}, s30, s32\ns_add_u32 s32, s32, 8192\ns_sub_u32 s34, s32, 163840\ns_cselect_b32 s32, s32, s34')
    def dmaA():
        if rounds[0]<20: k(f's_add_u32 m0, s31, {8192*rounds[0]}')
    def dmaB():
        if rounds[0]<20:
            k(f'buffer_load_dwordx4 v{VD}, s[20:23], s{50+rounds[0]} offen lds'); rounds[0]+=1
    k(f'''v_lshrrev_b32 v{HI}, 5, v{LANE}
    v_mov_b32 v{AK[0]}, v{VD}
    v_mul_u32_u24 v2, 2560, v{HI}
    v_add3_u32 v{AT[0]}, v1, v2, 0
    v_add_u32 v{AT[0]}, 1024, v{AT[0]}
    v_mul_u32_u24 v2, 320, v{HI}
    v_lshl_add_u32 v2, v{TOK}, 4, v2
    v_add_u32 v{AV[0]}, 1280, v2''')
    for g in (1,2):
        for A in (AK,AT,AV): k(f'v_add_u32 v{A[g]}, {61440*g}, v{A[0]}')
    k(f'v_and_b32 v2, 27, v{TOK}\nv_cmp_eq_u32 vcc, 24, v2\nv_mov_b32 v2, 0x3f803f80\nv_cndmask_b32 v2, 0, v2, vcc')
    for r in range(V[0],V[0]+32): k(f'v_mov_b32 v{r}, v2')
    k('s_mov_b32 s40, 0x000fffff\ns_mov_b32 s41, 0x000fffff')
    k(f'''s_mul_i32 s36, s27, 40960
    s_lshl_b32 s37, s24, 10
    s_add_u32 s36, s36, {OOFF}
    s_add_u32 s37, s37, s36
    s_lshr_b32 s38, s24, 2
    s_add_u32 s38, s38, 32
    s_lshl_b32 s38, s38, 10
    s_add_u32 s38, s38, s36
    s_bfe_u32 s39, s24, 0x10001
    s_lshl_b32 s39, s39, 9
    s_add_u32 s38, s38, s39
    s_and_b32 s39, s24, 1
    s_lshl_b32 s39, s39, 3
    s_add_u32 s38, s38, s39''')
    def off(i,base,extra):
        g=i//12
        return base[g],(i-12*g)*5120+extra
    def rdKL(i):
        L=[]
        a,o=off(i,AK,0); L.append(f'ds_read_b128 v[{KA}:{KA+3}], v{a} offset:{o}')
        a,o=off(i,AK,2560); L.append(f'ds_read_b128 v[{KB}:{KB+3}], v{a} offset:{o}')
        a,o=off(i,AT,0); L.append(f'ds_read_b64 v[{KT}:{KT+1}], v{a} offset:{o}')
        return L
    def rdK(i):
        for l in rdKL(i): k(l)
    def rdVL(i):
        L=[]
        for g in range(4):
            a,o=off(i,AV,(g//2)*2560+(g%2)*640); r=V[i%2]+4*g
            L.append(f'ds_read_b128 v[{r}:{r+3}], v{a} offset:{o}')
        return L
    def rdV(i):
        k('s_mov_b64 exec, s[40:41]')
        for l in rdVL(i): k(l)
        k('s_mov_b64 exec, -1')
    def qk(which,i):
        s=S[i%2]
        if 'noqk' in EXP and i>1: return
        if 'noqt' in EXP and i>1 and which==2: return
        if which==0: k(f'v_mfma_f32_32x32x16_bf16 v[{s}:{s+15}], v[{KA}:{KA+3}], v[{QM}:{QM+3}], 0')
        if which==1: k(f'v_mfma_f32_32x32x16_bf16 v[{s+16}:{s+31}], v[{KB}:{KB+3}], v[{QM}:{QM+3}], 0')
        if which==2: k(f'v_mfma_f32_32x32x4_2b_bf16 v[{s}:{s+31}], v[{KT}:{KT+1}], v[{QT}:{QT+1}], v[{s}:{s+31}]')
    def pv(g,i,first=False):
        if 'nopv' in EXP and not first: return
        r=V[i%2]+4*g;p=P+4*g
        k(f'v_mfma_f32_32x32x16_bf16 v[{O}:{O+15}], v[{r}:{r+3}], v[{p}:{p+3}], '+('0' if first else f'v[{O}:{O+15}]'))
    def need_rounds(i):
        return min(20,-(-((2*(i+2)+2)*2560)//8192))
    k.prof_mark(0)
    k(f's_waitcnt vmcnt({NPRE-2})\ns_barrier')
    k.prof_mark(1)
    if PROF: k('s_waitcnt lgkmcnt(0)')
    have=2
    rdK(0)
    k('s_waitcnt lgkmcnt(0)')
    qk(0,0);qk(1,0)
    qk(2,0)
    rdK(1);rdV(0)
    NI=32
    bar_at={1:4,4:10,14:20} if NPRE>=4 else None
    for i in range(NI):
        s=S[i%2]
        def e(j): k(f'v_exp_f32 v{s+j}, v{s+j}' if 'noexp' not in EXP else f'v_mul_f32 v{s+j}, v{s+j}, v{s+j}\nv_max3_f32 v{T}, v{s+j}, v{s+j}, v{s+j}')
        def c(g,j): k(f'v_cvt_pk_bf16_f32 v{P+4*g+j}, v{s+8*g+2*j}, v{s+8*g+2*j+1}')
        nxt=i+1<NI
        if PROF and i in (2,5,8,15,24):
            k('s_waitcnt lgkmcnt(0)'); k.prof_mark({2:3,5:4,8:5,15:6,24:7}[i]); k('s_waitcnt lgkmcnt(0)')
        RK=rdKL(i+2) if i+2<NI else ['','','']
        RV=rdVL(i+1) if nxt else None
        e(0);e(1)
        if i>0: pv(3,i-1)
        if i in bar_at:
            k(f's_waitcnt vmcnt({rounds[0]-bar_at[i]}) lgkmcnt(0)\ns_barrier'); have=bar_at[i]
        else: k('s_waitcnt lgkmcnt(0)')
        if i+2<NI: assert have>=need_rounds(i),(i,have,need_rounds(i))
        e(2);e(3);e(4);e(5)
        if nxt: qk(0,i+1)
        k(RK[0])
        e(6);e(7)
        for j in range(4): c(0,j)
        e(8)
        if nxt: qk(1,i+1)
        k(RK[1])
        e(9);e(10);e(11);e(12)
        if nxt: k('s_mov_b64 exec, s[40:41]')
        pv(0,i,i==0)
        if nxt:
            if 'v22' in EXP: k(RV[0]);k(RV[1])
            else:
                for l in RV: k(l)
            k('s_mov_b64 exec, -1')
        e(13);e(14);e(15)
        for j in range(4): c(1,j)
        if nxt: qk(2,i+1)
        k(RK[2])
        for j in range(16,24): e(j)
        if nxt and 'v22' in EXP: k('s_mov_b64 exec, s[40:41]')
        dmaA()
        pv(1,i)
        dmaB()
        if nxt and 'v22' in EXP: k(RV[2]);k(RV[3]);k('s_mov_b64 exec, -1')
        for j in range(4): c(2,j)
        e(24);e(25)
        dmaA()
        pv(2,i)
        dmaB()
        for j in range(26,32): e(j)
        for j in range(4): c(3,j)
    pv(3,NI-1)
    if PROF: k.prof_mark(2); k('s_waitcnt lgkmcnt(0)')
    fin=k.newlabel('fin');slow=k.newlabel('slow')
    k(f'''v_max3_f32 v{T}, |v{O}|, |v{O+1}|, |v{O+2}|
    v_max3_f32 v{T+1}, |v{O+3}|, |v{O+4}|, |v{O+5}|
    v_max3_f32 v{T+2}, |v{O+6}|, |v{O+7}|, |v{O+8}|
    v_max3_f32 v{T+3}, |v{O+9}|, |v{O+10}|, |v{O+11}|
    s_mov_b32 s42, 0x21800000
    s_mov_b32 s43, 0x5d800000
    s_mov_b32 s44, 0x7b800000
    v_max3_f32 v{T}, v{T}, v{T+1}, v{T+2}
    v_cmp_le_f32 s[46:47], s42, v{O+12}
    v_max_f32 v{T}, v{T}, v{T+3}
    v_cmp_ge_f32 s[48:49], s43, v{O+12}
    v_cmp_gt_f32 vcc, s44, v{T}
    s_and_b64 s[46:47], s[46:47], s[48:49]
    s_and_b64 s[46:47], s[46:47], vcc
    s_cmp_eq_u64 s[46:47], -1''')
    if 'forceslow' in EXP: k(f's_branch {slow}')
    elif 'no' not in EXP: k(f's_cbranch_scc0 {slow}')
    k.label(fin)
    k(f'v_rcp_f32 v{T}, v{O+12}')
    for j in range(12): k(f'v_mul_f32 v{O+j}, v{O+j}, v{T}')
    for j in range(6): k(f'v_cvt_pk_bf16_f32 v{O+j}, v{O+2*j}, v{O+2*j+1}')
    k(f'''buffer_store_dwordx4 v[{O}:{O+3}], v{VD}, s[20:23], s37 offen
    s_mov_b64 exec, 0xffffffff
    buffer_store_dwordx2 v[{O+4}:{O+5}], v{VD}, s[20:23], s38 offen''')
    k.prof_end(1,20,200)
    k('s_endpgm')
    k.label(slow)
    l1=k.newlabel('p1');l2=k.newlabel('p2')
    A0,A1,A2,M=T,T+1,T+2,T+3
    s=S[0]
    def rdKs():
        k(f'''ds_read_b128 v[{KA}:{KA+3}], v{A0}
        ds_read_b128 v[{KB}:{KB+3}], v{A0} offset:2560
        ds_read_b64 v[{KT}:{KT+1}], v{A1}''')
    k(f'v_mov_b32 v{A0}, v{AK[0]}\nv_mov_b32 v{A1}, v{AT[0]}\nv_mov_b32 v{M}, 0xff800000\ns_mov_b32 s42, 32')
    k.label(l1)
    rdKs()
    k('s_waitcnt lgkmcnt(0)')
    qk(0,0);qk(1,0);qk(2,0)
    k(f'v_add_u32 v{A0}, 5120, v{A0}\nv_add_u32 v{A1}, 5120, v{A1}')
    for j in range(16): k(f'v_max3_f32 v{M}, v{M}, v{s+2*j}, v{s+2*j+1}')
    k(f's_sub_u32 s42, s42, 1\ns_cmp_lg_u32 s42, 0\ns_cbranch_scc1 {l1}')
    k(f'''v_mov_b32 v{A0}, v{M}
    v_permlane32_swap_b32 v{A0}, v{M}
    v_max_f32 v{M}, v{M}, v{A0}''')
    for j in range(16): k(f'v_mul_f32 v{C+j}, -1.0, v{M}')
    for j in range(16): k(f'v_mov_b32 v{O+j}, 0')
    k(f'v_mov_b32 v{A0}, v{AK[0]}\nv_mov_b32 v{A1}, v{AT[0]}\nv_mov_b32 v{A2}, v{AV[0]}\ns_mov_b32 s42, 32')
    k.label(l2)
    rdKs()
    k('s_mov_b64 exec, s[40:41]')
    for g in range(4):
        r=V[0]+4*g
        k(f'ds_read_b128 v[{r}:{r+3}], v{A2} offset:{(g//2)*2560+(g%2)*640}')
    k('s_mov_b64 exec, -1\ns_waitcnt lgkmcnt(0)')
    k(f'v_mfma_f32_32x32x16_bf16 v[{s}:{s+15}], v[{KA}:{KA+3}], v[{QM}:{QM+3}], v[{C}:{C+15}]')
    k(f'v_mfma_f32_32x32x16_bf16 v[{s+16}:{s+31}], v[{KB}:{KB+3}], v[{QM}:{QM+3}], v[{C}:{C+15}]')
    qk(2,0)
    k(f'v_add_u32 v{A0}, 5120, v{A0}\nv_add_u32 v{A1}, 5120, v{A1}\nv_add_u32 v{A2}, 5120, v{A2}')
    for j in range(32): k(f'v_exp_f32 v{s+j}, v{s+j}')
    for g in range(4):
        for j in range(4): k(f'v_cvt_pk_bf16_f32 v{P+4*g+j}, v{s+8*g+2*j}, v{s+8*g+2*j+1}')
    for g in range(4): pv(g,0)
    k(f's_sub_u32 s42, s42, 1\ns_cmp_lg_u32 s42, 0\ns_cbranch_scc1 {l2}')
    k(f's_nop 15\ns_branch {fin}')
    k.label(end)
    k('s_endpgm')
    return k
```

```python
from asmlib import Kernel,PROF
from layout import *
from k1 import srd
import os
EXP=os.environ.get('EXP','')
HNOFF=0
KEYOFF=MISC
AOFF=MISC+0x1000

def wave_sum(k,regs):
    for m in ('quad_perm:[1,0,3,2]','quad_perm:[2,3,0,1]','row_half_mirror','row_mirror'):
        for r in regs: k(f'v_add_f32_dpp v{r}, v{r}, v{r} {m} row_mask:0xf bank_mask:0xf')
    for m in ('row_bcast:15 row_mask:0xa','row_bcast:31 row_mask:0xc'):
        for r in regs: k(f'v_add_f32_dpp v{r}, v{r}, v{r} {m} bank_mask:0xf')

def rbf(k,r,t=None):
    k(f'v_cvt_pk_bf16_f32 v{r}, v{r}, v{r}\nv_and_b32 v{r}, 0xffff0000, v{r}')

def gen_k3():
    k=Kernel('k3_oproj_kernel',vgpr=136)
    end=k.newlabel('end')
    OF=10;ACC=50;WF=70;LANE=110;VW=111;VM=116;VT=117;X=118;T=124
    k(f's_cmp_ge_u32 s2, 256\ns_cbranch_scc1 {end}')
    k.prof_start()
    k(f'''s_load_dwordx2 s[4:5], s[0:1], 0
    s_load_dwordx2 s[6:7], s[0:1], 16
    s_load_dwordx2 s[8:9], s[0:1], 80
    v_mov_b32 v130, v0
    v_lshrrev_b32 v1, 6, v0
    v_and_b32 v{LANE}, 63, v0
    v_readfirstlane_b32 s26, v1
    s_and_b32 s3, s2, 7
    s_lshl_b32 s3, s3, 2
    s_bfe_u32 s24, s2, 0x20003
    s_add_u32 s24, s24, s3            ; tb
    s_lshr_b32 s25, s2, 5             ; ct
    s_and_b32 s27, s26, 3             ; tt
    s_lshr_b32 s28, s26, 2            ; kh''')
    for i in range(5):
        k(f'''v_add_u32 v2, {64*i}, v{LANE}
        v_mul_u32_u24 v3, 6554, v2
        v_lshrrev_b32 v3, 16, v3          ; row = p/10
        v_mul_u32_u24 v4, {1280-160}, v3
        v_lshl_add_u32 v{VW+i}, v2, 4, v4''')
    k(f'''v_lshrrev_b32 v2, 4, v{LANE}
    v_lshlrev_b32 v2, 9, v2
    v_and_b32 v3, 15, v{LANE}
    v_lshl_add_u32 v2, v3, 4, v2
    s_and_b32 s3, s27, 1
    s_lshl_b32 s3, s3, 8
    v_add_u32 v2, s3, v2
    s_lshl_b32 s29, s24, 1
    s_lshr_b32 s3, s27, 1
    s_add_u32 s29, s29, s3
    s_mul_i32 s29, s29, 40960
    s_add_u32 s29, s29, {OOFF}
    s_lshl_b32 s30, s28, 14
    s_add_u32 s30, s30, s29
    s_lshl_b32 s31, s28, 12
    s_add_u32 s31, s31, s29
    s_add_u32 s31, s31, 32768
    s_mul_i32 s32, s25, 160
    s_mul_i32 s33, s26, {32*1280}
    s_add_u32 s33, s33, s32
    s_mul_i32 s34, s26, 5120
    s_waitcnt lgkmcnt(0)''')
    srd(k,12,4,2621440); srd(k,16,6,819200); srd(k,20,8,WS_BYTES)
    for s in range(8):
        if s%2==0 and s: k('s_add_u32 s30, s30, 4096')
        k(f'buffer_load_dwordx4 v[{OF+4*s}:{OF+4*s+3}], v2, s[20:23], s30 offen offset:{2048*(s%2)}')
    for s in range(2):
        k(f'buffer_load_dwordx4 v[{OF+32+4*s}:{OF+32+4*s+3}], v2, s[20:23], s31 offen offset:{2048*s}')
    skip=k.newlabel('skip')
    for b in range(3):
        if b==2: k(f's_cmp_ge_u32 s26, 4\ns_cbranch_scc1 {skip}')
        for i in range(5):
            k(f's_add_u32 m0, s34, {b*8*5120+i*1024}\ns_nop 0\nbuffer_load_dwordx4 v{VW+i}, s[16:19], s33 offen lds')
        k(f's_add_u32 s33, s33, {8*32*1280}')
    k.label(skip)
    k(f'''v_lshrrev_b32 v3, 3, v130            ; row
    v_and_b32 v4, 7, v130
    v_mul_u32_u24 v{T}, 1280, v3
    v_mul_u32_u24 v5, 20, v4
    v_add_u32 v{T}, v{T}, v5
    s_mul_i32 s35, s24, {64*1280}
    s_add_u32 s35, s35, s32
    buffer_load_dwordx4 v[{X}:{X+3}], v{T}, s[12:15], s35 offen
    buffer_load_dword v{X+4}, v{T}, s[12:15], s35 offen offset:16
    v_mul_u32_u24 v{T+1}, 336, v3
    v_mul_u32_u24 v5, 40, v4
    v_add_u32 v{T+1}, v{T+1}, v5
    v_add_u32 v{T+1}, 102400, v{T+1}
    v_lshrrev_b32 v3, 4, v{LANE}            ; g
    v_bfe_u32 v4, v{LANE}, 2, 2             ; r
    v_and_b32 v5, 3, v{LANE}                ; c
    v_lshrrev_b32 v6, 1, v3
    v_and_b32 v7, 1, v3
    v_mul_u32_u24 v8, 20, v6
    v_lshl_add_u32 v8, v7, 2, v8
    v_add_u32 v8, v8, v4
    v_mul_u32_u24 v8, 160, v8
    v_lshl_add_u32 v8, v5, 3, v8
    s_mul_i32 s3, s28, {8*6400}
    v_add_u32 v{VM}, s3, v8
    v_mul_u32_u24 v8, 80, v6
    v_mul_u32_u24 v9, 40, v7
    v_add3_u32 v8, v8, v9, v4
    v_add_u32 v8, 16, v8
    v_mul_u32_u24 v8, 160, v8
    v_lshl_add_u32 v8, v5, 3, v8
    s_mul_i32 s3, s28, {2*25600}
    v_add_u32 v{VT}, s3, v8
    v_and_b32 v4, 15, v{LANE}
    s_lshl_b32 s3, s27, 4
    v_add_u32 v4, s3, v4
    v_mul_u32_u24 v4, 336, v4
    v_lshl_add_u32 v4, v3, 4, v4
    s_mul_i32 s3, s28, {64*336}
    s_add_u32 s3, s3, 102400
    v_add_u32 v{T+2}, s3, v4
    v_mov_b32 v4, 0
    s_mov_b32 s3, {KEYOFF}
    s_cmp_lg_u32 s2, 0''')
    nz=k.newlabel('nz')
    k(f's_cbranch_scc1 {nz}\nbuffer_store_dword v4, off, s[20:23], s3')
    k.label(nz)
    k.prof_mark(0)
    k('s_waitcnt vmcnt(0) lgkmcnt(0)\ns_barrier')
    k.prof_mark(1)
    k('s_waitcnt lgkmcnt(0)')
    def rd(s,b):
        L=[]
        for c in range(5):
            w=WF+20*b+4*c
            if s<8: a,o1,o2=VM,s*6400+32*c,s*6400+32*c+1280
            else: a,o1,o2=VT,(s-8)*25600+32*c,(s-8)*25600+32*c+3200
            L.append(f'ds_read_b64_tr_b16 v[{w}:{w+1}], v{a} offset:{o1}')
            L.append(f'ds_read_b64_tr_b16 v[{w+2}:{w+3}], v{a} offset:{o2}')
        return L
    for l in rd(0,0): k(l)
    for s in range(10):
        b=s%2
        R=rd(s+1,1-b) if s<9 else ['']*10
        for c in range(5):
            w=WF+20*b+4*c;a=ACC+4*c
            k(f's_waitcnt lgkmcnt({(8-2*c)+(2*c if s<9 else 0)})')
            k(f'v_mfma_f32_16x16x32_bf16 v[{a}:{a+3}], v[{w}:{w+3}], v[{OF+4*s}:{OF+4*s+3}], '+('0' if s==0 else f'v[{a}:{a+3}]'))
            k(R[2*c]);k(R[2*c+1])
    for c in range(5):
        k(f'ds_write_b128 v{T+2}, v[{ACC+4*c}:{ACC+4*c+3}] offset:{64*c}')
    k('s_waitcnt lgkmcnt(0)\ns_barrier')
    for h in range(2):
        for i in range(5):
            k(f'ds_read_b64 v[{10*h+2*i}:{10*h+2*i+1}], v{T+1} offset:{h*64*336+8*i}')
    k('s_waitcnt lgkmcnt(0)')
    for i in range(10): k(f'v_add_f32 v{i}, v{i}, v{10+i}')
    for i in range(5):
        k(f'''v_cvt_pk_bf16_f32 v{10+i}, v{2*i}, v{2*i+1}
        v_lshlrev_b32 v{2*i}, 16, v{10+i}
        v_and_b32 v{2*i+1}, 0xffff0000, v{10+i}
        v_lshlrev_b32 v20, 16, v{X+i}
        v_and_b32 v21, 0xffff0000, v{X+i}
        v_add_f32 v{2*i}, v{2*i}, v20
        v_add_f32 v{2*i+1}, v{2*i+1}, v21
        v_cvt_pk_bf16_f32 v{24+i}, v{2*i}, v{2*i+1}''')
    k(f'''s_add_u32 s35, s35, {HOFF}
    buffer_store_dwordx4 v[24:27], v{T}, s[20:23], s35 offen
    buffer_store_dword v28, v{T}, s[20:23], s35 offen offset:16''')
    k.prof_end(2,20,128)
    k.label(end)
    k('s_endpgm')
    return k

def gen_k4():
    k=Kernel('k4_ln2_kernel',vgpr=64)
    end=k.newlabel('end')
    k(f's_cmp_ge_u32 s2, 256\ns_cbranch_scc1 {end}')
    k.prof_start()
    k(f'''s_load_dwordx2 s[4:5], s[0:1], 32
    s_load_dwordx2 s[6:7], s[0:1], 64
    s_load_dwordx2 s[8:9], s[0:1], 80
    v_mov_b32 v62, v0
    v_lshrrev_b32 v1, 6, v0
    v_and_b32 v2, 63, v0
    v_readfirstlane_b32 s26, v1
    v_mul_u32_u24 v40, 20, v2
    s_lshl_b32 s27, s2, 3
    s_add_u32 s27, s27, s26          ; row
    s_mul_i32 s28, s27, 1280
    s_add_u32 s29, s28, {HOFF}
    s_add_u32 s30, s28, {HNOFF}
    s_waitcnt lgkmcnt(0)''')
    srd(k,12,4,1280); srd(k,16,6,2621440); srd(k,20,8,WS_BYTES)
    k(f'''buffer_load_dwordx4 v[0:3], v40, s[20:23], s29 offen
    buffer_load_dword v4, v40, s[20:23], s29 offen offset:16
    buffer_load_dwordx4 v[6:9], v40, s[12:15], 0 offen
    buffer_load_dword v10, v40, s[12:15], 0 offen offset:16
    s_waitcnt vmcnt(2)''')
    H=12
    for i in range(5): k(f'v_lshlrev_b32 v{H+2*i}, 16, v{i}\nv_and_b32 v{H+2*i+1}, 0xffff0000, v{i}')
    k(f'v_add_f32 v41, v{H}, v{H+1}')
    for i in range(2,10): k(f'v_add_f32 v41, v41, v{H+i}')
    wave_sum(k,[41])
    k(f's_mov_b32 s3, 0x3acccccd\nv_mul_f32 v41, s3, v41\nv_readlane_b32 s31, v41, 63')
    D=22
    for i in range(10): k(f'v_subrev_f32 v{D+i}, s31, v{H+i}')
    k(f'v_mul_f32 v42, v{D}, v{D}')
    for i in range(1,10): k(f'v_fmac_f32 v42, v{D+i}, v{D+i}')
    wave_sum(k,[42])
    k(f'v_mul_f32 v42, s3, v42'); rbf(k,42)
    k(f'v_add_f32 v42, 0x3727c5ac, v42'); rbf(k,42)
    k(f'v_sqrt_f32 v42, v42'); rbf(k,42)
    k(f'v_rcp_f32 v42, v42'); rbf(k,41)
    k(f'v_readlane_b32 s32, v41, 63\nv_readlane_b32 s33, v42, 63')
    for i in range(10): k(f'v_subrev_f32 v{D+i}, s32, v{H+i}')
    for i in range(5):
        k(f'''v_cvt_pk_bf16_f32 v43, v{D+2*i}, v{D+2*i+1}
        v_lshlrev_b32 v{D+2*i}, 16, v43
        v_and_b32 v{D+2*i+1}, 0xffff0000, v43
        v_mul_f32 v{D+2*i}, s33, v{D+2*i}
        v_mul_f32 v{D+2*i+1}, s33, v{D+2*i+1}
        v_cvt_pk_bf16_f32 v{44+i}, v{D+2*i}, v{D+2*i+1}
        v_lshlrev_b32 v{D+2*i}, 16, v{44+i}
        v_and_b32 v{D+2*i+1}, 0xffff0000, v{44+i}
        v_add_f32 v{H+2*i}, v{H+2*i}, v{D+2*i}
        v_add_f32 v{H+2*i+1}, v{H+2*i+1}, v{D+2*i+1}
        v_cvt_pk_bf16_f32 v{50+i}, v{H+2*i}, v{H+2*i+1}''')
    k(f'''buffer_store_dwordx4 v[50:53], v40, s[16:19], s28 offen
    buffer_store_dword v54, v40, s[16:19], s28 offen offset:16
    buffer_store_dwordx4 v[44:47], v40, s[20:23], s30 offen
    buffer_store_dword v48, v40, s[20:23], s30 offen offset:16
    s_waitcnt vmcnt(4)
    v_mov_b32 v41, 0''')
    for i in range(5):
        k(f'''v_lshlrev_b32 v0, 16, v{6+i}
        v_and_b32 v1, 0xffff0000, v{6+i}
        v_fmac_f32 v41, v0, v{D+2*i}
        v_fmac_f32 v41, v1, v{D+2*i+1}''')
    wave_sum(k,[41])
    k(f'''v_cvt_pk_bf16_f32 v41, v41, v41
    v_ashrrev_i32 v0, 31, v41
    v_or_b32 v0, 0x80000000, v0
    v_xor_b32 v41, v41, v0
    v_and_b32 v41, 0xffff0000, v41
    s_sub_u32 s3, 0xffff, s27
    v_or_b32 v41, s3, v41
    s_mov_b32 s3, {KEYOFF}
    s_mov_b32 exec_lo, 0
    s_mov_b32 exec_hi, 0x80000000
    buffer_atomic_umax v41, off, s[20:23], s3''')
    k.prof_end(3,20,60)
    k.label(end)
    k('s_endpgm')
    return k

def blk_reduce(k,regs,LANE_T,wave_s,base,nval):
    wave_sum(k,regs)
    k(f's_mov_b32 exec_lo, 0\ns_mov_b32 exec_hi, 0x80000000')
    k(f's_lshl_b32 s3, s{wave_s}, 2\nv_mov_b32 v{LANE_T}, s3')
    for i,r in enumerate(regs): k(f'ds_write_b32 v{LANE_T}, v{r} offset:{base+32*i}')
    k('s_mov_b64 exec, -1\ns_waitcnt lgkmcnt(0)\ns_barrier')

def gen_k5():
    k=Kernel('k5_gateup_kernel',vgpr=64)
    end=k.newlabel('end')
    k(f's_cmp_ge_u32 s2, 216\ns_cbranch_scc1 {end}')
    k.prof_start()
    k(f'''s_load_dwordx4 s[4:7], s[0:1], 40
    s_load_dwordx2 s[8:9], s[0:1], 80
    v_mov_b32 v62, v0
    v_lshrrev_b32 v1, 6, v0
    v_readfirstlane_b32 s26, v1
    v_mul_u32_u24 v40, 3456, v0
    v_lshlrev_b32 v41, 1, v0
    s_and_b32 s3, s2, 7
    s_mul_i32 s3, s3, 27
    s_lshr_b32 s27, s2, 3
    s_add_u32 s27, s27, s3
    s_lshl_b32 s28, s27, 4
    s_add_u32 s29, s28, {512*3456}
    s_mov_b32 s30, {KEYOFF}
    s_waitcnt lgkmcnt(0)''')
    srd(k,12,4,640*3456); srd(k,16,6,640*3456); srd(k,20,8,WS_BYTES)
    k(f'''buffer_load_dword v42, off, s[20:23], s30
    buffer_load_dwordx4 v[0:3], v40, s[12:15], s28 offen
    buffer_load_dwordx4 v[4:7], v40, s[16:19], s28 offen
    buffer_load_dwordx4 v[8:11], v40, s[12:15], s29 offen
    buffer_load_dwordx4 v[12:15], v40, s[16:19], s29 offen
    s_waitcnt vmcnt(4)
    v_readfirstlane_b32 s31, v42
    s_and_b32 s31, s31, 0xffff
    s_sub_u32 s31, 0xffff, s31
    s_mul_i32 s31, s31, 1280
    s_add_u32 s31, s31, {HNOFF}
    buffer_load_ushort v43, v41, s[20:23], s31 offen
    buffer_load_ushort v44, v41, s[20:23], s31 offen offset:1024
    s_waitcnt vmcnt(0)
    v_lshlrev_b32 v43, 16, v43
    v_lshlrev_b32 v44, 16, v44
    v_cmp_gt_u32 vcc, 128, v62
    v_cndmask_b32 v44, 0, v44, vcc''')
    A=16
    for m in range(2):
        for i in range(4):
            k(f'''v_lshlrev_b32 v45, 16, v{4*m+i}
            v_and_b32 v46, 0xffff0000, v{4*m+i}
            v_mul_f32 v{A+8*m+2*i}, v45, v43
            v_mul_f32 v{A+8*m+2*i+1}, v46, v43
            v_lshlrev_b32 v45, 16, v{8+4*m+i}
            v_and_b32 v46, 0xffff0000, v{8+4*m+i}
            v_fmac_f32 v{A+8*m+2*i}, v45, v44
            v_fmac_f32 v{A+8*m+2*i+1}, v46, v44''')
    blk_reduce(k,list(range(A,A+16)),47,26,0,16)
    k(f'''s_cmp_lg_u32 s26, 0
    s_cbranch_scc1 {end}
    v_lshlrev_b32 v47, 5, v62
    s_mov_b64 exec, 0xff
    ds_read_b128 v[0:3], v47
    ds_read_b128 v[4:7], v47 offset:16
    ds_read_b128 v[8:11], v47 offset:256
    ds_read_b128 v[12:15], v47 offset:272
    s_waitcnt lgkmcnt(0)''')
    for b in (0,8):
        for i in range(1,8): k(f'v_add_f32 v{b}, v{b}, v{b+i}')
        rbf(k,b)
    k(f'''v_mul_f32 v1, 0xbfb8aa3b, v0
    v_exp_f32 v1, v1
    v_add_f32 v1, 1.0, v1
    v_rcp_f32 v1, v1
    v_mul_f32 v0, v0, v1''')
    rbf(k,0)
    k(f'''v_mul_f32 v0, v0, v8
    v_cvt_pk_bf16_f32 v0, v0, v0
    s_add_u32 s28, s28, {AOFF}
    buffer_store_short v0, v41, s[20:23], s28 offen''')
    k.prof_end(4,20,60)
    k.label(end)
    k('s_endpgm')
    return k

def gen_k6():
    k=Kernel('k6_down_kernel',vgpr=64)
    end=k.newlabel('end')
    k(f's_cmp_ge_u32 s2, 80\ns_cbranch_scc1 {end}')
    k.prof_start()
    k(f'''s_load_dwordx4 s[4:7], s[0:1], 56
    s_load_dwordx2 s[8:9], s[0:1], 80
    v_mov_b32 v62, v0
    v_lshrrev_b32 v1, 6, v0
    v_readfirstlane_b32 s26, v1
    v_mul_u32_u24 v40, 1280, v0
    v_lshlrev_b32 v41, 1, v0
    s_and_b32 s3, s2, 7
    s_mul_i32 s3, s3, 10
    s_lshr_b32 s27, s2, 3
    s_add_u32 s27, s27, s3
    s_lshl_b32 s28, s27, 4
    s_mov_b32 s30, {KEYOFF}
    s_mov_b32 s29, {AOFF}
    s_waitcnt lgkmcnt(0)''')
    srd(k,12,4,1728*1280); srd(k,16,6,2621440); srd(k,20,8,WS_BYTES)
    k(f'buffer_load_dword v42, off, s[20:23], s30')
    for i in range(4):
        k(f'buffer_load_ushort v{43+i}, v41, s[20:23], s29 offen offset:{1024*i}')
    k('s_mov_b32 s33, s28')
    for i in range(4):
        k(f'buffer_load_dwordx4 v[{4*i}:{4*i+3}], v40, s[12:15], s33 offen\ns_add_u32 s33, s33, {512*1280}')
    k(f'''s_waitcnt vmcnt(8)
    v_readfirstlane_b32 s31, v42
    s_and_b32 s32, s31, 0xffff
    s_sub_u32 s32, 0xffff, s32
    s_mul_i32 s32, s32, 1280
    s_add_u32 s32, s32, s28
    s_add_u32 s34, s32, {HOFF}
    s_add_u32 s35, s32, {HNOFF}
    buffer_load_ushort v48, v41, s[20:23], s34 offen
    buffer_load_ushort v49, v41, s[20:23], s35 offen
    s_waitcnt vmcnt(2)
    v_cmp_gt_u32 vcc, 192, v62
    v_cndmask_b32 v46, 0, v46, vcc''')
    for i in range(4): k(f'v_lshlrev_b32 v{43+i}, 16, v{43+i}')
    A=16
    for j in range(4):
        for i in range(4):
            op='v_mul_f32' if j==0 else 'v_fmac_f32'
            k(f'''v_lshlrev_b32 v50, 16, v{4*j+i}
            v_and_b32 v51, 0xffff0000, v{4*j+i}
            {op} v{A+2*i}, v50, v{43+j}
            {op} v{A+2*i+1}, v51, v{43+j}''')
    blk_reduce(k,list(range(A,A+8)),47,26,0,8)
    k(f'''s_cmp_lg_u32 s26, 0
    s_cbranch_scc1 {end}
    v_lshlrev_b32 v47, 5, v62
    s_mov_b64 exec, 0xff
    ds_read_b128 v[0:3], v47
    ds_read_b128 v[4:7], v47 offset:16
    s_and_b32 s31, s31, 0xffff0000
    s_ashr_i32 s3, s31, 31
    s_not_b32 s3, s3
    s_or_b32 s3, s3, 0x80000000
    s_xor_b32 s31, s31, s3
    s_and_b32 s31, s31, 0xffff0000     ; r as f32
    v_mov_b32 v8, 0xbfb8aa3b
    v_mul_f32 v8, s31, v8
    v_exp_f32 v8, v8
    v_add_f32 v8, 1.0, v8
    v_rcp_f32 v8, v8
    s_waitcnt vmcnt(0) lgkmcnt(0)''')
    rbf(k,8)
    for i in range(1,8): k(f'v_add_f32 v0, v0, v{i}')
    rbf(k,0)
    k('v_mul_f32 v0, v0, v8'); rbf(k,0)
    k('v_lshlrev_b32 v48, 16, v48\nv_lshlrev_b32 v49, 16, v49\nv_add_f32 v0, v0, v49'); rbf(k,0)
    k('''v_add_f32 v0, v0, v48
    v_cvt_pk_bf16_f32 v0, v0, v0
    buffer_store_short v0, v41, s[16:19], s32 offen''')
    k.prof_end(5,20,60)
    k.label(end)
    k('s_endpgm')
    return k

def gen_tail():
    return [(gen_k3(),256,512,145408),(gen_k4(),256,512,0),(gen_k5(),216,512,1024),(gen_k6(),80,512,1024)]
```

```python
import sys
sys.path.insert(0,'gen')
from asmlib import build
from k1 import gen_k1
OUT='sequential_preLN__mha_block__moe_arch_mod__prompt.s'
def main(out=OUT,verbose=False):
    L=[]
    k1=gen_k1(); k1.fix(verbose); L.append((k1,240,512,163840))
    try:
        from k2 import gen_k2
        k2=gen_k2(); k2.fix(verbose); L.append((k2,256,512,163840))
        from k3 import gen_tail
        for k,g,b,l in gen_tail():
            k.fix(verbose); L.append((k,g,b,l))
    except ImportError as e:
        print('skipping',e)
    for k,_,_,_ in L: print(k.name,'instrs',len(k.ins),'nops',k.nops,'maxv',k.maxv,'maxs',k.maxs)
    build(L,out)
if __name__=='__main__':
    main(verbose='-v' in sys.argv)
```

```python
from asmlib import Kernel,PROF
from layout import *
import os
EXP=os.environ.get('EXP','')

def srd(k,d,b,n):
    k(f's_mov_b32 s{d}, s{b}\ns_mov_b32 s{d+1}, s{b+1}\ns_mov_b32 s{d+2}, {n}\ns_mov_b32 s{d+3}, 0x20000')

def gen_k1(zero_words=0):
    k=Kernel('k1_qkv_kernel',vgpr=160)
    ACC=[0,16]; XF=[32,36,40,136]; WF=[[44,48],[52,56],[60,64]]
    SX=68;SXX=70;CS=72;SEL=[76,80]
    U=84
    VXA=[144,145,146,147]; VWA=[[148,149,150,151],[152,153,154,155]]
    VOXA=156;VOXB=157;VOW=88;VST=90;LANE=98;TOK=99;HI=100
    T=104
    end=k.newlabel('end')
    fill=k.newlabel('fill')
    k(f's_cmp_ge_u32 s2, 240\ns_cbranch_scc1 {fill}')
    k.prof_start()
    k('v_mov_b32 v142, v0')
    k('s_load_dwordx4 s[4:7], s[0:1], 0\ns_load_dwordx2 s[8:9], s[0:1], 80')
    k('''s_and_b32 s3, s2, 7
    s_mul_i32 s3, s3, 30
    s_lshr_b32 s10, s2, 3
    s_add_u32 s3, s3, s10          ; t
    s_mul_i32 s10, s3, 1093
    s_lshr_b32 s10, s10, 16        ; g = t/60
    s_mul_i32 s11, s10, 60
    s_sub_u32 s11, s3, s11         ; u
    s_lshr_b32 s25, s11, 2         ; jt
    s_and_b32 s11, s11, 3
    s_lshl_b32 s24, s10, 2
    s_add_u32 s24, s24, s11        ; rb
    v_lshrrev_b32 v1, 6, v0
    v_and_b32 v98, 63, v0
    v_readfirstlane_b32 s26, v1    ; wave
    ''')
    k(f'''s_and_b32 s27, s26, 1       ; fw
    s_lshr_b32 s28, s26, 1         ; tw
    s_xor_b32 s29, s27, s28        ; perm
    s_mul_i32 s30, s28, 20480
    s_lshl_b32 s31, s27, 10
    s_add_u32 s30, s30, s31
    s_lshl_b32 s31, s26, 10
    s_add_u32 s31, s31, 81920
    s_add_u32 s34, s24, s25
    s_mul_i32 s35, s34, 26
    s_lshr_b32 s35, s35, 8
    s_mul_i32 s35, s35, 10
    s_sub_u32 s34, s34, s35        ; rot
    s_mul_i32 s36, s24, 163840
    s_lshl_b32 s37, s25, 8
    ''')
    k(f'''v_lshrrev_b32 v1, 3, v{LANE}          ; l/8
    s_lshl_b32 s3, s27, 3
    v_add_u32 v1, s3, v1                  ; rr
    v_lshrrev_b32 v2, 1, v1
    v_and_b32 v2, 7, v2                   ; swz
    v_and_b32 v3, 7, v{LANE}
    v_xor_b32 v2, v2, v3
    s_lshl_b32 s3, s28, 5
    v_add_u32 v1, s3, v1
    v_mul_u32_u24 v1, 1280, v1
    v_lshl_add_u32 v{VOXA}, v2, 4, v1
    v_add_u32 v{VOXB}, 20480, v{VOXA}
    v_lshrrev_b32 v1, 3, v{LANE}
    s_lshl_b32 s3, s26, 3
    v_add_u32 v1, s3, v1                  ; k row
    v_mul_u32_u24 v1, 3840, v1
    v_lshrrev_b32 v2, 2, v{LANE}
    v_and_b32 v2, 4, v2
    v_xor_b32 v2, v2, v3
    v_lshl_add_u32 v{VOW}, v2, 4, v1
    s_waitcnt lgkmcnt(0)''')
    srd(k,12,4,2621440); srd(k,16,6,2457600); srd(k,20,8,WS_BYTES)
    def dma(slot,part=None):
        P=[f"""s_lshl_b32 s32, s34, 7
        s_add_u32 s32, s32, s36
        s_mul_i32 s33, s34, 245760
        s_add_u32 s33, s33, s37
        s_add_u32 m0, s30, {slot*4096}
        s_add_u32 s34, s34, 1
        buffer_load_dwordx4 v{VOXA}, s[12:15], s32 offen lds""",
        f"""s_add_u32 m0, s31, {slot*8192}
        s_cmp_eq_u32 s34, 10
        buffer_load_dwordx4 v{VOW}, s[16:19], s33 offen lds
        s_cselect_b32 s34, 0, s34""",
        f"""s_add_u32 m0, s30, {slot*4096+2048}
        s_nop 0
        buffer_load_dwordx4 v{VOXB}, s[12:15], s32 offen lds""",
        f"""s_add_u32 m0, s31, {slot*8192+40960-128}
        s_nop 0
        buffer_load_dwordx4 v{VOW}, s[16:19], s33 offen offset:128 lds"""]
        if part is None:
            for p in P: k(p)
        else: k(P[part])
    for c in range(2): dma(c)
    k(f'''v_and_b32 v{TOK}, 31, v{LANE}
    v_lshrrev_b32 v{HI}, 5, v{LANE}
    v_lshrrev_b32 v1, 1, v{TOK}
    v_and_b32 v1, 7, v1
    v_xor_b32 v1, v1, v{HI}
    v_lshlrev_b32 v1, 4, v1
    v_lshl_add_u32 v1, v{TOK}, 7, v1
    s_mul_i32 s3, s28, 20480
    v_add_u32 v1, s3, v1''')
    for j in range(4):
        k(f's_xor_b32 s3, s29, {j}\ns_lshl_b32 s3, s3, 5\nv_xor_b32 v{VXA[j]}, s3, v1')
    k(f'''v_bfe_u32 v1, v{LANE}, 2, 2          ; r
    v_lshl_add_u32 v2, v{HI}, 3, v1           ; 8hi+r
    v_lshlrev_b32 v2, 7, v2
    v_lshrrev_b32 v1, 1, v1
    v_lshl_add_u32 v2, v1, 6, v2              ; (r>>1)*64
    v_bfe_u32 v1, v{LANE}, 4, 1
    v_lshl_add_u32 v2, v1, 5, v2
    v_and_b32 v1, 3, v{LANE}
    v_lshl_add_u32 v2, v1, 3, v2
    s_mul_i32 s3, s27, 40960
    s_add_u32 s3, s3, 81920
    v_add_u32 v2, s3, v2''')
    for j in range(4):
        k(f's_xor_b32 s3, s29, {j}\ns_lshl_b32 s3, s3, 11\nv_add_u32 v{VWA[0][j]}, s3, v2\nv_xor_b32 v{VWA[1][j]}, 64, v{VWA[0][j]}')
    k(f'''v_and_b32 v1, 15, v{LANE}
    v_bfe_u32 v2, v{LANE}, 4, 1
    v_mov_b32 v3, 0x3f803f80
    v_cmp_eq_u32 vcc, v1, v2
    v_add_u32 v2, 2, v2
    v_cndmask_b32 v{SEL[0]}, 0, v3, vcc
    v_cmp_eq_u32 vcc, v1, v2
    v_cmp_eq_u32 s[46:47], 1, v{HI}
    v_cndmask_b32 v{SEL[1]}, 0, v3, vcc
    s_lshl_b32 s38, s24, 2
    s_add_u32 s38, s38, s28''')
    for t in range(2):
        for i in range(1,4): k(f'v_mov_b32 v{SEL[t]+i}, v{SEL[t]}')
    for r in (SX,SX+1,SXX,SXX+1): k(f'v_mov_b32 v{r}, 0')
    vlab=k.newlabel('vpath')
    k(f's_cmp_ge_u32 s25, 10\ns_cbranch_scc1 {vlab}')

    def reads(n):
        c,j=n//4,n%4
        slot=c%5;x=XF[n%4];L=[]
        if 'nox' not in EXP: L.append(f'ds_read_b128 v[{x}:{x+3}], v{VXA[j]} offset:{slot*4096}')
        for t in range(2):
            w=WF[n%3][t]
            if 'now' in EXP: continue
            L.append(f'ds_read_b64_tr_b16 v[{w}:{w+1}], v{VWA[t][j]} offset:{slot*8192}')
            L.append(f'ds_read_b64_tr_b16 v[{w+2}:{w+3}], v{VWA[t][j]} offset:{slot*8192+512}')
        return L
    def body(isv):
        def mm(t,n,first):
            a=ACC[t];w=WF[n%3][t];x=XF[n%4]
            A,B=(x,w) if isv else (w,x)
            k(f'v_mfma_f32_32x32x16_bf16 v[{a}:{a+15}], v[{A}:{A+3}], v[{B}:{B+3}], '+('0' if first else f'v[{a}:{a+15}]'))
        def xstat(x,i):
            u=U+2*(i%2)
            k(f'''v_lshlrev_b32 v{u}, 16, v{x+i}
            v_and_b32 v{u+1}, 0xffff0000, v{x+i}
            v_fmac_f32 v{SXX}, v{u}, v{u}
            v_add_f32 v{SX}, v{SX}, v{u}
            v_fmac_f32 v{SXX+1}, v{u+1}, v{u+1}
            v_add_f32 v{SX+1}, v{SX+1}, v{u+1}''')
        def csum(t,b,first):
            w=WF[b][t]
            k(f'v_mfma_f32_16x16x32_bf16 v[{CS}:{CS+3}], v[{SEL[t]}:{SEL[t]+3}], v[{w}:{w+3}], '+('0' if first else f'v[{CS}:{CS+3}]'))
        addr(isv)
        sched={}
        q=[(c,p) for c in (2,3,4) for p in range(4)]
        for n in range(6): sched[n]=q[2*n:2*n+2]
        for c in range(5,10):
            for p in range(4): sched.setdefault(4*(c-4)+2+p,[]).append((c,p))
        issued=8
        k.prof_mark(0)
        k('s_waitcnt vmcnt(4) lgkmcnt(0)\ns_barrier')
        k.prof_mark(1)
        k('s_waitcnt lgkmcnt(0)')
        for l in reads(0)+reads(1): k(l)
        nr=len(reads(0))
        for c in range(10):
            for j in range(4):
                n=4*c+j;b=n%3
                R=reads(n+2) if n+2<40 else []
                if n==39:
                    k('s_waitcnt lgkmcnt(0)\ns_barrier')
                    R=[f'ds_read_b128 v[{T}:{T+3}], v{T+30}',f'ds_read_b128 v[{T+4}:{T+7}], v{T+30} offset:2048',f'ds_read_b128 v[{T+8}:{T+11}], v{T+31} offset:4096']
                elif j==2 and c<9:
                    k(f's_waitcnt vmcnt({issued-4*(c+2)}) lgkmcnt({nr})\ns_barrier')
                    if PROF and c in (1,4,6):
                        k('s_waitcnt lgkmcnt(0)'); k.prof_mark({1:3,4:4,6:5}[c]); k('s_waitcnt lgkmcnt(0)')
                else:
                    k(f's_waitcnt lgkmcnt({nr})')
                st='nostat' not in EXP
                x=XF[(n-(n%2))%4]
                last2=(n==38)
                mm(0,n,n==0)
                for l in R[:3]: k(l)
                if st and n<39: xstat(x,2*(n%2))
                if st and last2: xstat(x,1)
                if j==0: csum(0,b,n==0)
                mm(1,n,n==0)
                for l in R[3:]: k(l)
                if st and n<38: xstat(x,2*(n%2)+1)
                if st and last2: xstat(x,2); xstat(x,3)
                if j==0: csum(1,b,False)
                for (cc,p) in sched.get(n,[]):
                    dma(cc%5,p); issued+=1
                if last2:
                    k(f'''v_add_f32 v{SX}, v{SX}, v{SX+1}
                    v_add_f32 v{SXX}, v{SXX}, v{SXX+1}
                    s_mov_b64 exec, 0xffff
                    ds_write_b32 v{T+29}, v{CS} offset:4096
                    ds_write_b32 v{T+29}, v{CS+1} offset:{4096+256}
                    ds_write_b32 v{T+29}, v{CS+2} offset:{4096+512}
                    ds_write_b32 v{T+29}, v{CS+3} offset:{4096+768}
                    s_mov_b64 exec, -1
                    ds_write_b32 v{T+28}, v{SX}
                    ds_write_b32 v{T+28}, v{SXX} offset:2048''')
        if PROF:
            k('s_waitcnt lgkmcnt(0)'); k.prof_mark(2); k('s_waitcnt lgkmcnt(0)')
        k(f'''s_waitcnt lgkmcnt(1)
        v_add_f32 v{T}, v{T}, v{T+1}
        v_add_f32 v{T+2}, v{T+2}, v{T+3}
        v_add_f32 v{T+4}, v{T+4}, v{T+5}
        v_add_f32 v{T+6}, v{T+6}, v{T+7}
        v_add_f32 v{T}, v{T}, v{T+2}
        v_add_f32 v{T+4}, v{T+4}, v{T+6}
        s_mov_b32 s3, 0x3acccccd
        v_mul_f32 v{T}, s3, v{T}                  ; mean
        v_mul_f32 v{T+4}, s3, v{T+4}
        v_fma_f32 v{T+4}, -v{T}, v{T}, v{T+4}     ; var
        v_max_f32 v{T+4}, 0, v{T+4}
        v_cvt_pk_bf16_f32 v{T+4}, v{T+4}, v{T+4}
        v_cvt_pk_bf16_f32 v{T+2}, -v{T}, -v{T}    ; (-m,-m)
        v_and_b32 v{T+4}, 0xffff0000, v{T+4}
        v_add_f32 v{T+4}, 0x3727c5ac, v{T+4}
        v_cndmask_b32 v{T+16}, 0, v{T+2}, s[46:47]
        v_cndmask_b32 v{T+2}, v{T+2}, 0, s[46:47]
        v_cvt_pk_bf16_f32 v{T+4}, v{T+4}, v{T+4}
        v_and_b32 v{T+3}, 0xffff, v{T+2}
        v_and_b32 v{T+17}, 0xffff, v{T+16}
        v_and_b32 v{T+4}, 0xffff0000, v{T+4}
        v_sqrt_f32 v{T+4}, v{T+4}
        s_waitcnt lgkmcnt(0)
        v_cvt_pk_bf16_f32 v{T+4}, v{T+4}, v{T+4}
        v_and_b32 v{T+4}, 0xffff0000, v{T+4}
        v_rcp_f32 v{T+4}, v{T+4}                  ; rinv
        s_mov_b32 s3, 0x07060302''')
        q=T+8
        k(f'''v_add_f32 v{q}, v{q}, v{q+1}
        v_add_f32 v{q+2}, v{q+2}, v{q+3}
        v_add_f32 v{q}, v{q}, v{q+2}
        v_and_b32 v{q+1}, 0xffff0000, v{q}
        v_sub_f32 v{q+1}, v{q}, v{q+1}
        v_and_b32 v{q+2}, 0xffff0000, v{q+1}
        v_sub_f32 v{q+2}, v{q+1}, v{q+2}
        v_perm_b32 v{q+4}, v{q+1}, v{q}, s3
        v_cvt_pk_bf16_f32 v{q+5}, v{q+2}, 0''')
        if isv:
            k(f'''ds_write_b32 v{T+27}, v{T+4} offset:8192
            s_waitcnt lgkmcnt(0)''')
            for j in range(4):
                k(f'ds_read_b128 v[{XF[0]+4*j}:{XF[0]+4*j+3}], v{T+26} offset:{8192+32*j}')
        else:
            k(f'v_mul_f32 v{T+4}, s39, v{T+4}')
        for t in range(2):
            q=T+12;a=ACC[t];nm=[T+2,T+16][t]
            A,B=(nm,q) if isv else (q,nm)
            k(f'v_mfma_f32_32x32x8_bf16 v[{a}:{a+15}], v[{A}:{A+1}], v[{B}:{B+1}], v[{a}:{a+15}]')
        if isv: k('s_waitcnt lgkmcnt(0)')
        for t in range(2):
            a=ACC[t]
            for i in range(16):
                k(f'v_mul_f32 v{a+i}, '+(f'v{XF[0]+i}' if isv else f'v{T+4}')+f', v{a+i}')
            for i in range(8):
                k(f'v_cvt_pk_bf16_f32 v{a+i}, v{a+2*i}, v{a+2*i+1}')
            if isv:
                for s in range(2):
                    k(f'buffer_store_dwordx4 v[{a+4*s}:{a+4*s+3}], v{VST+t}, s[20:23], 0 offen offset:{640*s}'+(' sc1' if 'k1sc1' in EXP else ''))
            else:
                for j in range(4):
                    k(f'buffer_store_dwordx2 v[{a+2*j}:{a+2*j+1}], v{VST+4*t+j}, s[20:23], 0 offen'+(' sc1' if 'k1sc1' in EXP else ''))
        k.prof_end(0,20,140)
        k('s_endpgm')
    def addr(isv):
        k(f'''s_lshl_b32 s3, s28, 5
        v_add_u32 v{T}, s3, v{TOK}
        v_lshlrev_b32 v{T+30}, 4, v{T}
        v_lshl_add_u32 v{T+28}, v{HI}, 2, v{T+30}
        s_lshl_b32 s3, s27, 3
        v_add_u32 v{T+28}, s3, v{T+28}
        s_lshl_b32 s3, s27, 6
        v_add_u32 v{T}, s3, v{LANE}
        v_lshlrev_b32 v{T+31}, 4, v{T}
        s_lshl_b32 s3, s28, 2
        v_add_u32 v{T+29}, s3, v{T+31}''')
        if isv:
            k(f'''s_lshl_b32 s3, s26, 7
            v_lshl_add_u32 v{T+27}, v{TOK}, 2, s3
            v_lshl_add_u32 v{T+26}, v{HI}, 4, s3
            s_sub_u32 s3, s25, 10
            s_lshl_b32 s3, s3, 7
            s_lshl_b32 s10, s27, 6
            s_add_u32 s3, s3, s10
            s_mul_i32 s10, s38, 2560
            s_add_u32 s10, s10, {KVOFF+1280}
            v_mul_u32_u24 v{T+2}, 320, v{HI}
            v_add_u32 v{T+2}, s10, v{T+2}
            s_mov_b32 s11, {163840-320}''')
            for t in range(2):
                k(f'''v_add_u32 v{T}, s3, v{TOK}
                v_mul_u32_u24 v{T+1}, 3277, v{T}
                v_lshrrev_b32 v{T+1}, 16, v{T+1}         ; head
                v_lshl_add_u32 v{T}, v{T}, 4, v{T+2}
                v_mad_u32_u24 v{VST+t}, v{T+1}, s11, v{T}
                s_add_u32 s3, s3, 32''')
        else:
            k(f'''s_cmp_ge_u32 s25, 5
            s_cselect_b32 s3, 5, 0
            s_mov_b32 s10, 1280
            s_cselect_b32 s10, 2560, s10
            s_mov_b32 s11, 81920
            s_cselect_b32 s11, 163840, s11
            s_cselect_b32 s48, {KVOFF}, {QOFF}
            s_cselect_b32 s39, 1.0, 0x3ea52b5c
            s_sub_u32 s3, s25, s3                      ; jt%5
            s_mul_i32 s10, s10, s38
            s_add_u32 s48, s48, s10
            s_lshl_b32 s3, s3, 5
            s_lshl_b32 s10, s27, 4
            s_add_u32 s3, s3, s10
            v_add_u32 v{T}, s3, v{HI}                  ; c0
            v_lshlrev_b32 v{T+5}, 4, v{TOK}
            v_lshlrev_b32 v{T+6}, 3, v{TOK}
            v_add_u32 v{T+6}, 1024, v{T+6}''')
            for i in range(8):
                k(f'''v_mul_u32_u24 v{T+1}, 205, v{T}
                v_lshrrev_b32 v{T+1}, 10, v{T+1}           ; head
                v_mul_u32_u24 v{T+2}, 5, v{T+1}
                v_sub_u32 v{T+2}, v{T}, v{T+2}             ; sub
                v_and_b32 v{T+3}, 1, v{T+2}
                v_lshl_add_u32 v{T+3}, v{T+3}, 9, v{T+5}
                v_lshrrev_b32 v{T+4}, 1, v{T+2}
                v_lshl_add_u32 v{T+3}, v{T+4}, 3, v{T+3}
                v_cmp_eq_u32 vcc, 4, v{T+2}
                v_mul_u32_u24 v{T+1}, s11, v{T+1}
                v_add_u32 v{T}, 2, v{T}
                v_cndmask_b32 v{T+3}, v{T+3}, v{T+6}, vcc
                v_add3_u32 v{VST+i}, v{T+1}, v{T+3}, s48''')
    body(False)
    k.label(vlab)
    body(True)
    k.label(fill)
    k(f's_cmp_ge_u32 s2, 256\ns_cbranch_scc1 {end}\ns_load_dwordx2 s[8:9], s[0:1], 80')
    k(f'''s_sub_u32 s3, s2, 240
    s_mul_i32 s3, s3, {PF_BYTES//16}
    s_add_u32 s3, s3, {PF_BASE}
    v_lshlrev_b32 v0, 4, v0
    v_mov_b32 v4, -1
    v_mov_b32 v5, -1
    v_mov_b32 v6, -1
    v_mov_b32 v7, -1
    s_waitcnt lgkmcnt(0)''')
    srd(k,20,8,WS_BYTES)
    for i in range(PF_BYTES//16//8192):
        k(f'buffer_store_dwordx4 v[4:7], v0, s[20:23], s3 offen sc1\ns_add_u32 s3, s3, 8192')
    k.label(end)
    k('s_endpgm')
    return k
```

```python
from asmlib import Kernel,PROF
from layout import *
from k1 import srd
from k3 import wave_sum,rbf
import os
EXP=os.environ.get('EXP','')
SPIN=1<<16

def red8(k,regs):
    for m in ('quad_perm:[1,0,3,2]','quad_perm:[2,3,0,1]','row_half_mirror'):
        for r in regs: k(f'v_add_f32_dpp v{r}, v{r}, v{r} {m} row_mask:0xf bank_mask:0xf')

def reduce16(k,A):
    for i in range(8): k(f'v_permlane32_swap_b32 v{A+i}, v{A+i+8}')
    for i in range(8): k(f'v_add_f32 v{A+i}, v{A+i}, v{A+i+8}')
    for i in range(4): k(f'v_permlane16_swap_b32 v{A+i}, v{A+i+4}')
    for i in range(4): k(f'v_add_f32 v{A+i}, v{A+i}, v{A+i+4}')
    for i in range(2): k(f'v_add_f32_dpp v{A+i}, v{A+i}, v{A+i} row_ror:8 row_mask:0xf bank_mask:0x3')
    for i in range(2): k(f'v_add_f32_dpp v{A+i}, v{A+i+2}, v{A+i+2} row_ror:8 row_mask:0xf bank_mask:0xc')
    k(f'v_add_f32_dpp v{A}, v{A}, v{A} row_half_mirror row_mask:0xf bank_mask:0x5')
    k(f'v_add_f32_dpp v{A}, v{A+1}, v{A+1} row_half_mirror row_mask:0xf bank_mask:0xa')
    k(f'v_add_f32_dpp v{A}, v{A}, v{A} quad_perm:[1,0,3,2] row_mask:0xf bank_mask:0xf')
    k(f'v_add_f32_dpp v{A}, v{A}, v{A} quad_perm:[2,3,0,1] row_mask:0xf bank_mask:0xf')

def poll(k,loads,checks,end,sT=56):
    L=k.newlabel('poll');ok=k.newlabel('ok')
    k.label(L)
    k(loads)
    k('s_waitcnt vmcnt(0)')
    k(checks)
    k(f's_cbranch_vccz {ok}\ns_sub_u32 s{sT}, s{sT}, 1\ns_cbranch_scc1 {end}\ns_branch {L}')
    k.label(ok)

def gen_tail2():
    k=Kernel('k3_tail_kernel',vgpr=200)
    end=k.newlabel('end')
    OF=10;ACC=50;WF=70;LANE=110;VW=111;VM=116;VT=117;X=118;T=124
    TID=130;WR=132;FW=140;FP=172
    k(f's_cmp_ge_u32 s2, 256\ns_cbranch_scc1 {end}')
    k.prof_start()
    k(f'''s_load_dwordx2 s[4:5], s[0:1], 0
    s_load_dwordx2 s[6:7], s[0:1], 16
    s_load_dwordx2 s[8:9], s[0:1], 80
    s_load_dwordx8 s[60:67], s[0:1], 32
    s_load_dwordx2 s[68:69], s[0:1], 64
    v_mov_b32 v{TID}, v0
    v_lshrrev_b32 v1, 6, v0
    v_and_b32 v{LANE}, 63, v0
    v_readfirstlane_b32 s26, v1
    s_and_b32 s3, s2, 7
    s_lshl_b32 s3, s3, 2
    s_bfe_u32 s24, s2, 0x20003
    s_add_u32 s24, s24, s3            ; tb
    s_lshr_b32 s25, s2, 5             ; ct
    s_and_b32 s27, s26, 3             ; tt
    s_lshr_b32 s28, s26, 2            ; kh
    s_mov_b32 s56, {SPIN}''')
    for i in range(5):
        k(f'''v_add_u32 v2, {64*i}, v{LANE}
        v_mul_u32_u24 v3, 6554, v2
        v_lshrrev_b32 v3, 16, v3          ; row = p/10
        v_mul_u32_u24 v4, {1280-160}, v3
        v_lshl_add_u32 v{VW+i}, v2, 4, v4''')
    k(f'''v_lshrrev_b32 v2, 4, v{LANE}
    v_lshlrev_b32 v2, 9, v2
    v_and_b32 v3, 15, v{LANE}
    v_lshl_add_u32 v2, v3, 4, v2
    s_and_b32 s3, s27, 1
    s_lshl_b32 s3, s3, 8
    v_add_u32 v2, s3, v2
    s_lshl_b32 s29, s24, 1
    s_lshr_b32 s3, s27, 1
    s_add_u32 s29, s29, s3
    s_mul_i32 s29, s29, 40960
    s_add_u32 s29, s29, {OOFF}
    s_lshl_b32 s30, s28, 14
    s_add_u32 s30, s30, s29
    s_lshl_b32 s31, s28, 12
    s_add_u32 s31, s31, s29
    s_add_u32 s31, s31, 32768
    s_mul_i32 s32, s25, 160
    s_mul_i32 s33, s26, {32*1280}
    s_add_u32 s33, s33, s32
    s_mul_i32 s34, s26, 5120
    s_waitcnt lgkmcnt(0)''')
    srd(k,12,4,2621440); srd(k,16,6,819200); srd(k,20,8,WS_BYTES)
    for s in range(8):
        if s%2==0 and s: k('s_add_u32 s30, s30, 4096')
        k(f'buffer_load_dwordx4 v[{OF+4*s}:{OF+4*s+3}], v2, s[20:23], s30 offen offset:{2048*(s%2)}')
    for s in range(2):
        k(f'buffer_load_dwordx4 v[{OF+32+4*s}:{OF+32+4*s+3}], v2, s[20:23], s31 offen offset:{2048*s}')
    skip=k.newlabel('skip')
    for b in range(3):
        if b==2: k(f's_cmp_ge_u32 s26, 4\ns_cbranch_scc1 {skip}')
        for i in range(5):
            k(f's_add_u32 m0, s34, {b*8*5120+i*1024}\ns_nop 0\nbuffer_load_dwordx4 v{VW+i}, s[16:19], s33 offen lds')
        k(f's_add_u32 s33, s33, {8*32*1280}')
    k.label(skip)
    srd(k,40,60,1280); srd(k,52,68,2621440)
    k(f'''v_lshrrev_b32 v3, 3, v{TID}            ; row
    v_and_b32 v4, 7, v{TID}
    v_mul_u32_u24 v{T}, 1280, v3
    v_mul_u32_u24 v5, 20, v4
    v_add_u32 v{T}, v{T}, v5
    s_mul_i32 s35, s24, {64*1280}
    s_add_u32 s35, s35, s32
    buffer_load_dwordx4 v[{X}:{X+3}], v{T}, s[12:15], s35 offen
    buffer_load_dword v{X+4}, v{T}, s[12:15], s35 offen offset:16
    buffer_load_dwordx4 v[{WR}:{WR+3}], v5, s[40:43], s32 offen
    buffer_load_dword v{WR+4}, v5, s[40:43], s32 offen offset:16
    v_mov_b32 v{T+5}, v5                    ; cg*20
    v_mul_u32_u24 v6, 20, v{LANE}
    buffer_load_dwordx4 v[{FP}:{FP+3}], v6, s[40:43], 0 offen
    buffer_load_dword v{FP+4}, v6, s[40:43], 0 offen offset:16
    v_lshlrev_b32 v{T+3}, 4, v3
    v_lshl_add_u32 v{T+4}, v4, 10, v{T+3}
    v_mul_u32_u24 v{T+1}, 336, v3
    v_mul_u32_u24 v5, 40, v4
    v_add_u32 v{T+1}, v{T+1}, v5
    v_add_u32 v{T+1}, 102400, v{T+1}
    v_lshrrev_b32 v3, 4, v{LANE}            ; g
    v_bfe_u32 v4, v{LANE}, 2, 2             ; r
    v_and_b32 v5, 3, v{LANE}                ; c
    v_lshrrev_b32 v6, 1, v3
    v_and_b32 v7, 1, v3
    v_mul_u32_u24 v8, 20, v6
    v_lshl_add_u32 v8, v7, 2, v8
    v_add_u32 v8, v8, v4
    v_mul_u32_u24 v8, 160, v8
    v_lshl_add_u32 v8, v5, 3, v8
    s_mul_i32 s3, s28, {8*6400}
    v_add_u32 v{VM}, s3, v8
    v_mul_u32_u24 v8, 80, v6
    v_mul_u32_u24 v9, 40, v7
    v_add3_u32 v8, v8, v9, v4
    v_add_u32 v8, 16, v8
    v_mul_u32_u24 v8, 160, v8
    v_lshl_add_u32 v8, v5, 3, v8
    s_mul_i32 s3, s28, {2*25600}
    v_add_u32 v{VT}, s3, v8
    v_and_b32 v4, 15, v{LANE}
    s_lshl_b32 s3, s27, 4
    v_add_u32 v4, s3, v4
    v_mul_u32_u24 v4, 336, v4
    v_lshl_add_u32 v4, v3, 4, v4
    s_mul_i32 s3, s28, {64*336}
    s_add_u32 s3, s3, 102400
    v_add_u32 v{T+2}, s3, v4''')
    dn=k.newlabel('dn');pf=k.newlabel('pf')
    k(f's_cmp_ge_u32 s2, 216\ns_cbranch_scc1 {dn}')
    srd(k,44,62,640*3456); srd(k,48,64,640*3456)
    k(f'''s_and_b32 s3, s2, 7
    s_mul_i32 s3, s3, 27
    s_lshr_b32 s36, s2, 3
    s_add_u32 s36, s36, s3
    s_lshl_b32 s36, s36, 4
    v_mul_u32_u24 v3, 6912, v{TID}
    buffer_load_dwordx4 v[{FW}:{FW+3}], v3, s[44:47], s36 offen
    buffer_load_dwordx4 v[{FW+4}:{FW+7}], v3, s[44:47], s36 offen offset:3456
    buffer_load_dwordx4 v[{FW+8}:{FW+11}], v3, s[48:51], s36 offen
    buffer_load_dwordx4 v[{FW+12}:{FW+15}], v3, s[48:51], s36 offen offset:3456
    s_branch {pf}''')
    k.label(dn)
    srd(k,44,66,1728*1280)
    k(f'''s_and_b32 s3, s2, 7
    s_mul_i32 s3, s3, 5
    s_sub_u32 s36, s2, 216
    s_lshr_b32 s36, s36, 3
    s_add_u32 s36, s36, s3
    s_lshl_b32 s36, s36, 5
    v_mul_u32_u24 v3, 5120, v{TID}''')
    for r in range(4):
        for c in range(2):
            d=FW+16*(r//2)+8*c+4*(r%2)
            k(f'buffer_load_dwordx4 v[{d}:{d+3}], v3, s[44:47], s36 offen offset:{1280*r+16*c}')
    k.label(pf)
    k.prof_mark(0)
    k('s_waitcnt vmcnt(0) lgkmcnt(0)\ns_barrier')
    k.prof_mark(1)
    k('s_waitcnt lgkmcnt(0)')
    def rd(s,b):
        L=[]
        for c in range(5):
            w=WF+20*b+4*c
            if s<8: a,o1,o2=VM,s*6400+32*c,s*6400+32*c+1280
            else: a,o1,o2=VT,(s-8)*25600+32*c,(s-8)*25600+32*c+3200
            L.append(f'ds_read_b64_tr_b16 v[{w}:{w+1}], v{a} offset:{o1}')
            L.append(f'ds_read_b64_tr_b16 v[{w+2}:{w+3}], v{a} offset:{o2}')
        return L
    side=[]
    side+=[f'v_lshlrev_b32 v0, 16, v{FP}',f'v_and_b32 v1, 0xffff0000, v{FP}']
    for i in range(1,5):
        side+=[f'v_lshlrev_b32 v2, 16, v{FP+i}',f'v_and_b32 v3, 0xffff0000, v{FP+i}','v_add_f32 v0, v0, v2','v_add_f32 v1, v1, v3']
    side+=['v_add_f32 v0, v0, v1','s_nop 1']
    for m in ('quad_perm:[1,0,3,2] row_mask:0xf','quad_perm:[2,3,0,1] row_mask:0xf','row_half_mirror row_mask:0xf','row_mirror row_mask:0xf','row_bcast:15 row_mask:0xa','row_bcast:31 row_mask:0xc'):
        side+=[f'v_add_f32_dpp v0, v0, v0 {m} bank_mask:0xf']
    side+=['v_readlane_b32 s57, v0, 63','s_mov_b32 s58, 0x05040100','s_mov_b32 s59, 0x07060302']
    for q in range(4):
        b=FW+8*q
        for i in range(4): side+=[f'v_perm_b32 v{FP+2*i}, v{b+4+i}, v{b+i}, s58',f'v_perm_b32 v{FP+2*i+1}, v{b+4+i}, v{b+i}, s59']
        for i in range(8): side+=[f'v_mov_b32 v{b+i}, v{FP+i}']
    for l in rd(0,0): k(l)
    for s in range(10):
        b=s%2
        R=rd(s+1,1-b) if s<9 else ['']*10
        for c in range(5):
            w=WF+20*b+4*c;a=ACC+4*c
            k(f's_waitcnt lgkmcnt({(8-2*c)+(2*c if s<9 else 0)})')
            k(f'v_mfma_f32_16x16x32_bf16 v[{a}:{a+3}], v[{w}:{w+3}], v[{OF+4*s}:{OF+4*s+3}], '+('0' if s==0 else f'v[{a}:{a+3}]'))
            k(R[2*c]);k(R[2*c+1])
            for _ in range(2):
                if side: k(side.pop(0))
    assert not side,len(side)
    k.prof_mark(2)
    for c in range(5):
        k(f'ds_write_b128 v{T+2}, v[{ACC+4*c}:{ACC+4*c+3}] offset:{64*c}')
    k('s_waitcnt lgkmcnt(0)\ns_barrier')
    for h in range(2):
        for i in range(5):
            k(f'ds_read_b64 v[{10*h+2*i}:{10*h+2*i+1}], v{T+1} offset:{h*64*336+8*i}')
    k(f's_lshl_b32 s37, s24, 13\ns_add_u32 s37, s37, {STATS}\ns_lshl_b32 s38, s25, 10\ns_add_u32 s38, s38, s37')
    k('s_waitcnt lgkmcnt(0)')
    for i in range(10): k(f'v_add_f32 v{i}, v{i}, v{10+i}')
    HP=24;S1=30
    for i in range(5):
        k(f'''v_cvt_pk_bf16_f32 v{10+i}, v{2*i}, v{2*i+1}
        v_lshlrev_b32 v20, 16, v{X+i}
        v_and_b32 v21, 0xffff0000, v{X+i}
        v_lshlrev_b32 v{2*i}, 16, v{10+i}
        v_and_b32 v{2*i+1}, 0xffff0000, v{10+i}
        v_add_f32 v{2*i}, v{2*i}, v20
        v_add_f32 v{2*i+1}, v{2*i+1}, v21
        v_cvt_pk_bf16_f32 v{HP+i}, v{2*i}, v{2*i+1}
        v_lshlrev_b32 v{2*i}, 16, v{HP+i}
        v_and_b32 v{2*i+1}, 0xffff0000, v{HP+i}''')
        if i==0:
            k(f'''v_add_f32 v{S1}, v0, v1
            v_dot2_f32_bf16 v{S1+1}, v{HP}, v{HP}, 0
            v_dot2_f32_bf16 v{S1+2}, v{HP}, v{WR}, 0''')
        else:
            k(f'''v_add_f32 v22, v{2*i}, v{2*i+1}
            v_dot2c_f32_bf16 v{S1+1}, v{HP+i}, v{HP+i}
            v_dot2c_f32_bf16 v{S1+2}, v{HP+i}, v{WR+i}
            v_add_f32 v{S1}, v{S1}, v22''')
    red8(k,[S1,S1+1,S1+2])
    for i in range(3): k(f'v_min_u32 v{S1+i}, -2, v{S1+i}')
    k(f'''s_mov_b32 exec_lo, 0x01010101
    s_mov_b32 exec_hi, 0x01010101
    buffer_store_dwordx3 v[{S1}:{S1+2}], v{T+3}, s[20:23], s38 offen sc1
    s_mov_b64 exec, -1''')
    if 'hdbg' in EXP:
        k(f'''s_add_u32 s3, s35, {HOFF}
        buffer_store_dwordx4 v[{HP}:{HP+3}], v{T}, s[20:23], s3 offen
        buffer_store_dword v{HP+4}, v{T}, s[20:23], s3 offen offset:16''')
    k.prof_mark(3)
    Q=34
    poll(k,f'buffer_load_dwordx3 v[{Q}:{Q+2}], v{T+4}, s[20:23], s37 offen sc1',
         f'v_max3_u32 v{Q+3}, v{Q}, v{Q+1}, v{Q+2}\nv_cmp_eq_u32 vcc, -1, v{Q+3}',end)
    k.prof_mark(4)
    red8(k,[Q,Q+1,Q+2])
    k(f'''s_mov_b32 s3, 0x3acccccd
    v_mul_f32 v{Q}, s3, v{Q}                  ; mean
    v_mul_f32 v{Q+1}, s3, v{Q+1}
    v_fma_f32 v{Q+1}, -v{Q}, v{Q}, v{Q+1}
    v_max_f32 v{Q+1}, 0, v{Q+1}''')
    rbf(k,Q+1); k(f'v_add_f32 v{Q+1}, 0x3727c5ac, v{Q+1}'); rbf(k,Q+1)
    k(f'v_sqrt_f32 v{Q+1}, v{Q+1}'); rbf(k,Q); rbf(k,Q+1)
    k(f'''v_rcp_f32 v{Q+1}, v{Q+1}
    v_fma_f32 v{Q+2}, -v{Q}, s57, v{Q+2}
    s_lshl_b32 s39, s24, 6
    v_lshrrev_b32 v{Q+4}, 3, v{TID}
    v_add_u32 v{Q+4}, s39, v{Q+4}
    v_mul_f32 v{Q+2}, v{Q+2}, v{Q+1}
    v_sub_u32 v{Q+5}, 0x7ff, v{Q+4}
    v_cvt_pk_bf16_f32 v{Q+2}, v{Q+2}, v{Q+2}
    v_ashrrev_i32 v{Q+3}, 31, v{Q+2}
    v_or_b32 v{Q+3}, 0x80000000, v{Q+3}
    v_xor_b32 v{Q+2}, v{Q+2}, v{Q+3}
    v_and_b32 v{Q+2}, 0xffff0000, v{Q+2}
    v_or_b32 v{Q+2}, v{Q+2}, v{Q+5}              ; key
    v_max_u32_dpp v{Q+3}, v{Q+2}, v{Q+2} row_ror:8 row_mask:0xf bank_mask:0xf
    s_lshl_b32 s3, s24, 3
    s_add_u32 s39, s3, s26                       ; wb
    v_readlane_b32 s70, v{Q+3}, 0
    v_readlane_b32 s71, v{Q+3}, 16
    v_readlane_b32 s72, v{Q+3}, 32
    v_readlane_b32 s73, v{Q+3}, 48
    s_lshl_b32 s74, s25, 10
    s_add_u32 s74, s74, {KEYS}
    s_lshl_b32 s3, s39, 2
    s_add_u32 s3, s3, s74
    s_max_u32 s70, s70, s71
    s_max_u32 s72, s72, s73
    s_max_u32 s70, s70, s72
    v_mov_b32 v{Q+3}, s70
    s_mov_b64 exec, 1
    buffer_store_dword v{Q+3}, off, s[20:23], s3 sc1
    s_mov_b64 exec, -1''')
    HN=40;OU=46
    for i in range(5):
        k(f'''v_sub_f32 v20, v{2*i}, v{Q}
        v_sub_f32 v21, v{2*i+1}, v{Q}
        v_cvt_pk_bf16_f32 v22, v20, v21
        v_lshlrev_b32 v20, 16, v22
        v_and_b32 v21, 0xffff0000, v22
        v_mul_f32 v20, v20, v{Q+1}
        v_mul_f32 v21, v21, v{Q+1}
        v_cvt_pk_bf16_f32 v{HN+i}, v20, v21
        v_min_u32 v{HP+i}, -2, v{HP+i}
        v_min_u32 v{HN+i}, -2, v{HN+i}''')
    k(f'''v_cmp_eq_u32 vcc, s70, v{Q+2}
    s_mul_i32 s39, s39, 2560
    s_add_u32 s39, s39, s32
    s_add_u32 s39, s39, {CAND}
    s_mov_b64 exec, vcc
    buffer_store_dwordx4 v[{HN}:{HN+3}], v{T+5}, s[20:23], s39 offen sc1
    buffer_store_dword v{HN+4}, v{T+5}, s[20:23], s39 offen offset:16 sc1
    buffer_store_dwordx4 v[{HP}:{HP+3}], v{T+5}, s[20:23], s39 offen offset:1280 sc1
    buffer_store_dword v{HP+4}, v{T+5}, s[20:23], s39 offen offset:1296 sc1
    s_mov_b64 exec, -1''')
    for i in range(5):
        k(f'''v_lshlrev_b32 v20, 16, v{HN+i}
        v_and_b32 v21, 0xffff0000, v{HN+i}
        v_add_f32 v20, v20, v{2*i}
        v_add_f32 v21, v21, v{2*i+1}
        v_cvt_pk_bf16_f32 v{OU+i}, v20, v21''')
    k(f'v_lshlrev_b32 v20, 4, v{LANE}')
    k.prof_mark(5)
    KY=52
    poll(k,f'buffer_load_dwordx4 v[{KY}:{KY+3}], v20, s[20:23], s74 offen sc1',
         f'v_max3_u32 v{KY}, v{KY}, v{KY+1}, v{KY+2}\nv_max_u32 v{KY}, v{KY}, v{KY+3}\nv_cmp_eq_u32 vcc, -1, v{KY}',end)
    for m in ('quad_perm:[1,0,3,2] row_mask:0xf','quad_perm:[2,3,0,1] row_mask:0xf','row_half_mirror row_mask:0xf','row_mirror row_mask:0xf'):
        k(f'v_max_u32_dpp v{KY}, v{KY}, v{KY} {m} bank_mask:0xf')
    k(f'''v_readlane_b32 s70, v{KY}, 0
    v_readlane_b32 s71, v{KY}, 16
    v_readlane_b32 s72, v{KY}, 32
    v_readlane_b32 s73, v{KY}, 48
    s_max_u32 s70, s70, s71
    s_max_u32 s72, s72, s73
    s_max_u32 s70, s70, s72
    s_and_b32 s71, s70, 0x7ff
    s_sub_u32 s71, 0x7ff, s71
    s_lshr_b32 s72, s71, 3
    s_mul_i32 s72, s72, 2560
    s_add_u32 s72, s72, {CAND}
    v_cmp_ne_u32 s[74:75], s71, v{Q+4}''')
    k.prof_mark(6)
    def outst():
        k(f'''s_mov_b64 exec, s[74:75]
        buffer_store_dwordx4 v[{OU}:{OU+3}], v{T}, s[52:55], s35 offen
        buffer_store_dword v{OU+4}, v{T}, s[52:55], s35 offen offset:16
        s_mov_b64 exec, -1''')
    dn2=k.newlabel('dn2');bar=k.newlabel('bar');fin=k.newlabel('fin')
    A=60
    k(f's_cmp_ge_u32 s2, 216\ns_cbranch_scc1 {dn2}')
    k(f's_cmp_ge_u32 s26, 5\ns_cbranch_scc1 {bar}')
    k(f'v_lshlrev_b32 v20, 2, v{TID}')
    poll(k,f'buffer_load_dword v21, v20, s[20:23], s72 offen sc1','v_cmp_eq_u32 vcc, -1, v21',end)
    for i in range(16): k(f'v_dot2_f32_bf16 v{A+i}, v{FW+i}, v21, 0')
    reduce16(k,A)
    k(f'''v_lshlrev_b32 v20, 3, v{LANE}
    s_lshl_b32 s3, s26, 2
    v_add_u32 v20, s3, v20
    s_mov_b32 exec_lo, 0x11111111
    s_mov_b32 exec_hi, 0x11111111
    ds_write_b32 v20, v{A}
    s_mov_b64 exec, -1
    s_waitcnt lgkmcnt(0)''')
    k.label(bar)
    k(f's_barrier\ns_cmp_lg_u32 s26, 0\ns_cbranch_scc1 {fin}')
    k(f'''v_lshlrev_b32 v20, 5, v{LANE}
    s_mov_b64 exec, 0xff
    ds_read_b128 v[{A}:{A+3}], v20
    ds_read_b32 v{A+4}, v20 offset:16
    ds_read_b128 v[{A+8}:{A+11}], v20 offset:256
    ds_read_b32 v{A+12}, v20 offset:272
    v_lshlrev_b32 v20, 1, v{LANE}
    s_add_u32 s36, s36, {AOFF2}
    s_waitcnt lgkmcnt(0)''')
    for b in (A,A+8):
        k(f'v_add_f32 v{b}, v{b}, v{b+1}\nv_add_f32 v{b+2}, v{b+2}, v{b+3}\nv_add_f32 v{b}, v{b}, v{b+4}\nv_add_f32 v{b}, v{b}, v{b+2}')
        rbf(k,b)
    k(f'''v_mul_f32 v{A+1}, 0xbfb8aa3b, v{A}
    v_exp_f32 v{A+1}, v{A+1}
    v_add_f32 v{A+1}, 1.0, v{A+1}
    v_rcp_f32 v{A+1}, v{A+1}
    v_mul_f32 v{A}, v{A}, v{A+1}''')
    rbf(k,A)
    k(f'''v_mul_f32 v{A}, v{A}, v{A+8}
    v_mov_b32_dpp v{A+1}, v{A} quad_perm:[1,0,3,2] row_mask:0xf bank_mask:0xf
    v_cvt_pk_bf16_f32 v{A}, v{A}, v{A+1}
    v_min_u32 v{A}, -2, v{A}
    s_mov_b64 exec, 0x55
    buffer_store_dword v{A}, v20, s[20:23], s36 offen sc1
    s_mov_b64 exec, -1''')
    k.label(fin)
    outst()
    k.prof_mark(7)
    k.prof_end(2,20,128)
    k('s_endpgm')
    k.label(dn2)
    w0=k.newlabel('w0');fin2=k.newlabel('fin2')
    outst()
    k(f's_cmp_lg_u32 s26, 0\ns_cbranch_scc1 {w0}')
    k(f'''v_lshrrev_b32 v20, 1, v{LANE}
    v_lshlrev_b32 v20, 2, v20
    s_add_u32 s72, s72, s36
    s_mov_b64 exec, 0xffff''')
    poll(k,f'buffer_load_dword v24, v20, s[20:23], s72 offen sc1\nbuffer_load_dword v25, v20, s[20:23], s72 offen offset:1280 sc1',
         'v_max_u32 v21, v24, v25\nv_cmp_eq_u32 vcc, -1, v21',end)
    k(f'''v_and_b32 v21, 1, v{LANE}
    v_cmp_eq_u32 vcc, 0, v21
    v_lshlrev_b32 v22, 16, v24
    v_lshlrev_b32 v23, 16, v25
    v_and_b32 v24, 0xffff0000, v24
    v_and_b32 v25, 0xffff0000, v25
    v_cndmask_b32 v24, v24, v22, vcc          ; hn
    v_cndmask_b32 v25, v25, v23, vcc          ; h
    s_and_b32 s70, s70, 0xffff0000
    s_ashr_i32 s3, s70, 31
    s_not_b32 s3, s3
    s_or_b32 s3, s3, 0x80000000
    s_xor_b32 s70, s70, s3
    s_and_b32 s70, s70, 0xffff0000     ; r as f32
    v_mov_b32 v26, 0xbfb8aa3b
    v_mul_f32 v26, s70, v26
    v_exp_f32 v26, v26
    v_add_f32 v26, 1.0, v26
    v_rcp_f32 v26, v26''')
    rbf(k,26)
    k('s_mov_b64 exec, -1')
    k.label(w0)
    k(f'''v_lshlrev_b32 v20, 3, v{TID}
    v_mov_b32 v22, 0
    v_mov_b32 v23, 0
    v_mov_b32 v27, 432
    v_cmp_gt_u32 vcc, v27, v{TID}
    s_mov_b32 s3, {AOFF2}
    s_mov_b64 exec, vcc
    s_cbranch_execz {fin2}''')
    poll(k,f'buffer_load_dwordx2 v[22:23], v20, s[20:23], s3 offen sc1','v_max_u32 v21, v22, v23\nv_cmp_eq_u32 vcc, -1, v21',end)
    k.label(fin2)
    k('s_mov_b64 exec, -1')
    for i in range(16): k(f'v_dot2_f32_bf16 v{A+i}, v{FW+i}, v22, 0')
    for i in range(16): k(f'v_dot2c_f32_bf16 v{A+i}, v{FW+16+i}, v23')
    reduce16(k,A)
    k(f'''v_lshlrev_b32 v20, 3, v{LANE}
    s_lshl_b32 s3, s26, 2
    v_add_u32 v20, s3, v20
    s_mov_b32 exec_lo, 0x11111111
    s_mov_b32 exec_hi, 0x11111111
    ds_write_b32 v20, v{A}
    s_mov_b64 exec, -1
    s_waitcnt lgkmcnt(0)
    s_barrier
    s_cmp_lg_u32 s26, 0''')
    fin3=k.newlabel('fin3')
    k(f'''s_cbranch_scc1 {fin3}
    v_lshlrev_b32 v20, 5, v{LANE}
    s_mov_b64 exec, 0xffff
    ds_read_b128 v[{A}:{A+3}], v20
    ds_read_b128 v[{A+4}:{A+7}], v20 offset:16
    v_lshlrev_b32 v20, 1, v{LANE}
    s_mul_i32 s71, s71, 1280
    s_add_u32 s71, s71, s36
    s_waitcnt lgkmcnt(0)''')
    for i in (0,2,4,6): k(f'v_add_f32 v{A+i}, v{A+i}, v{A+i+1}')
    k(f'v_add_f32 v{A}, v{A}, v{A+2}\nv_add_f32 v{A+4}, v{A+4}, v{A+6}\nv_add_f32 v{A}, v{A}, v{A+4}')
    rbf(k,A)
    k(f'v_mul_f32 v{A}, v{A}, v26'); rbf(k,A)
    k(f'v_add_f32 v{A}, v{A}, v24'); rbf(k,A)
    k(f'''v_add_f32 v{A}, v{A}, v25
    v_cvt_pk_bf16_f32 v{A}, v{A}, v{A}
    buffer_store_short v{A}, v20, s[52:55], s71 offen''')
    k.label(fin3)
    k.prof_mark(7)
    k.prof_end(2,20,128)
    k.label(end)
    k('s_endpgm')
    return [(k,256,512,145408)]
```

```python
from asmlib import Kernel,PROF
from layout import *
from k1 import srd
from k3 import rbf
from k4 import red8,reduce16
import os
EXP=os.environ.get('EXP','')
NPRE=int(os.environ.get('NPRE','4'))
SPIN=1<<16
ST=75

def poll(k,loads,checks,end,sleep=0):
    L=k.newlabel('poll');ok=k.newlabel('ok')
    k.label(L)
    k(loads)
    k('s_waitcnt vmcnt(0)')
    k(checks)
    k(f's_cbranch_vccz {ok}\ns_sub_u32 s{ST}, s{ST}, 1\ns_cbranch_scc1 {end}')
    if sleep: k(f's_sleep {sleep}')
    k(f's_branch {L}')
    k.label(ok)

def gen_k2():
    k=Kernel('k2_attn_kernel',vgpr=240)
    S=[0,32];P=64;O=80;KA=96;KB=100;KT=104;V=[108,124]
    QM=140;QT=144;AK=[146,147,148];AT=[149,150,151];AV=[152,153,154]
    LANE=155;TOK=156;HI=157;VD=158;TID=159;T=164;C=32
    VW=168;FA=173;X=178;WR=184;FW=190;WA=222;XO=227;CG=228
    end=k.newlabel('end')
    k(f's_cmp_ge_u32 s2, 256\ns_cbranch_scc1 {end}')
    k.prof_start()
    k('''s_load_dwordx2 s[8:9], s[0:1], 80
    s_load_dwordx2 s[4:5], s[0:1], 0
    s_load_dwordx2 s[6:7], s[0:1], 16
    s_load_dwordx8 s[52:59], s[0:1], 32
    s_load_dwordx2 s[60:61], s[0:1], 64''')
    k(f'''v_mov_b32 v{TID}, v0
    v_mov_b32 v232, v0
    v_lshrrev_b32 v1, 6, v0
    v_and_b32 v{LANE}, 63, v0
    v_readfirstlane_b32 s26, v1        ; wave
    s_and_b32 s3, s2, 7
    s_lshl_b32 s3, s3, 2
    s_bfe_u32 s24, s2, 0x20003
    s_add_u32 s24, s24, s3
    s_lshr_b32 s25, s2, 5
    v_lshlrev_b32 v{VD}, 4, v{LANE}
    s_mul_i32 s30, s24, 163840
    s_add_u32 s30, s30, {KVOFF}
    s_lshl_b32 s31, s26, 10
    s_mul_i32 s32, s25, 20480
    s_add_u32 s32, s32, s31
    s_lshl_b32 s27, s25, 3
    s_add_u32 s27, s27, s26            ; q tile T
    s_mul_i32 s33, s24, 81920
    s_mul_i32 s34, s27, 1280
    s_add_u32 s33, s33, s34            ; q offset
    v_and_b32 v{TOK}, 31, v{LANE}
    v_lshlrev_b32 v1, 3, v{TOK}
    s_waitcnt lgkmcnt(0)''')
    srd(k,20,8,WS_BYTES)
    vm=[]
    k(f'''buffer_load_dwordx4 v[{QM}:{QM+3}], v{VD}, s[20:23], s33 offen
    buffer_load_dwordx2 v[{QT}:{QT+1}], v1, s[20:23], s33 offen offset:1024''')
    rounds=[0]
    def dma():
        n=rounds[0];rounds[0]+=1;vm.append(('r',n))
        k(f'''s_add_u32 s35, s30, s32
        s_add_u32 m0, s31, {8192*n}
        s_add_u32 s32, s32, 8192
        buffer_load_dwordx4 v{VD}, s[20:23], s35 offen lds
        s_sub_u32 s34, s32, 163840
        s_cselect_b32 s32, s32, s34''')
    for n in range(NPRE): dma()
    srd(k,12,6,819200); srd(k,48,60,2621440); srd(k,60,4,2621440)
    srd(k,16,54,640*3456); srd(k,44,56,640*3456); srd(k,4,58,0)
    k(f'''s_cmp_ge_u32 s2, 216
    s_cselect_b32 s6, 0, s18''')
    srd(k,64,52,1280)
    k(f'''v_lshrrev_b32 v3, 3, v{TID}            ; row
    v_and_b32 v4, 7, v{TID}
    v_mul_u32_u24 v{XO}, 1280, v3
    v_mul_u32_u24 v{CG}, 20, v4
    v_add_u32 v{XO}, v{XO}, v{CG}
    s_mul_i32 s42, s25, 160
    s_mul_i32 s43, s24, {64*1280}
    s_add_u32 s43, s43, s42
    v_mul_u32_u24 v6, 20, v{LANE}
    buffer_load_dwordx4 v[{X}:{X+3}], v{XO}, s[60:63], s43 offen
    buffer_load_dword v{X+4}, v{XO}, s[60:63], s43 offen offset:16
    buffer_load_dwordx4 v[{WR}:{WR+3}], v{CG}, s[64:67], s42 offen
    buffer_load_dword v{WR+4}, v{CG}, s[64:67], s42 offen offset:16
    buffer_load_dwordx4 v[{WA}:{WA+3}], v6, s[64:67], 0 offen
    buffer_load_dword v{WA+4}, v6, s[64:67], 0 offen offset:16''')
    vm+=[('x',i) for i in range(6)]
    for n in range(NPRE,20):
        k(f's_add_u32 s{50+n}, s30, s32\ns_add_u32 s32, s32, 8192\ns_sub_u32 s34, s32, 163840\ns_cselect_b32 s32, s32, s34')
    k(f'''v_lshrrev_b32 v{HI}, 5, v{LANE}
    v_mov_b32 v{AK[0]}, v{VD}
    v_mul_u32_u24 v2, 2560, v{HI}
    v_add3_u32 v{AT[0]}, v1, v2, 0
    v_add_u32 v{AT[0]}, 1024, v{AT[0]}
    v_mul_u32_u24 v2, 320, v{HI}
    v_lshl_add_u32 v2, v{TOK}, 4, v2
    v_add_u32 v{AV[0]}, 1280, v2''')
    for g in (1,2):
        for A in (AK,AT,AV): k(f'v_add_u32 v{A[g]}, {61440*g}, v{A[0]}')
    k(f'v_and_b32 v2, 27, v{TOK}\nv_cmp_eq_u32 vcc, 24, v2\nv_mov_b32 v2, 0x3f803f80\nv_cndmask_b32 v2, 0, v2, vcc')
    for r in range(V[0],V[0]+32): k(f'v_mov_b32 v{r}, v2')
    k('s_mov_b32 s40, 0x000fffff\ns_mov_b32 s41, 0x000fffff')
    k(f'''s_mul_i32 s36, s27, 40960
    s_lshl_b32 s37, s24, 10
    s_add_u32 s36, s36, {OOFF}
    s_add_u32 s37, s37, s36
    s_lshr_b32 s38, s24, 2
    s_add_u32 s38, s38, 32
    s_lshl_b32 s38, s38, 10
    s_add_u32 s38, s38, s36
    s_bfe_u32 s39, s24, 0x10001
    s_lshl_b32 s39, s39, 9
    s_add_u32 s38, s38, s39
    s_and_b32 s39, s24, 1
    s_lshl_b32 s39, s39, 3
    s_add_u32 s38, s38, s39''')
    for i in range(5):
        k(f'''v_add_u32 v2, {64*i}, v{LANE}
        v_mul_u32_u24 v3, 6554, v2
        v_lshrrev_b32 v3, 16, v3
        v_mul_u32_u24 v4, {1280-160}, v3
        v_lshl_add_u32 v{VW+i}, v2, 4, v4''')
    k(f'''s_mul_i32 s70, s26, {80*1280}
    s_add_u32 s70, s70, s42
    s_add_u32 s71, s70, {32*1280}
    s_add_u32 s72, s70, {64*1280}
    s_mul_i32 s73, s26, 12800
    s_and_b32 s3, s2, 7
    s_mul_i32 s28, s3, 27
    s_lshr_b32 s29, s2, 3
    s_add_u32 s28, s28, s29             ; j
    s_mul_i32 s52, s28, 10240
    s_add_u32 s53, s52, 5120
    s_lshl_b32 s28, s28, 4
    s_mul_i32 s10, s3, 432
    s_andn2_b32 s10, s10, 63
    s_mul_i32 s11, s29, {20*3456}
    s_add_u32 s10, s10, s11
    s_mul_i32 s3, s3, 5
    s_add_u32 s3, s3, s29
    s_sub_u32 s3, s3, 27
    s_lshl_b32 s3, s3, 5
    s_cmp_ge_u32 s2, 216
    s_cselect_b32 s74, s3, s28
    s_cselect_b32 s11, 0x40000000, 0
    v_mul_u32_u24 v{FA}, 6912, v{TID}
    v_add_u32 v{FA}, s11, v{FA}
    v_lshlrev_b32 v{FA+1}, 2, v{TID}
    v_lshrrev_b32 v2, 3, v{TID}
    v_mul_u32_u24 v2, 3456, v2
    v_and_b32 v3, 7, v{TID}
    v_lshl_add_u32 v2, v3, 6, v2
    v_mov_b32 v3, 160
    v_cmp_gt_u32 vcc, v3, v{TID}
    v_mov_b32 v3, 0x40000000
    s_mov_b32 s{ST}, {SPIN}
    v_cndmask_b32 v{FA+2}, v3, v2, vcc''')
    DW=FW+16
    warm=[f'buffer_load_dword v{DW+j}, v{FA+2}, s[{(16,44)[j]}:{(16,44)[j]+3}], s10 offen' for j in range(2)]
    ffn=[f'buffer_load_dword v{DW+j}, v{FA+1}, s[4:7], s{52+j//4} offen offset:{1280*(j%4)}' for j in range(8)]
    ffn+=[f'buffer_load_dwordx4 v[{FW+4*j}:{FW+4*j+3}], v{FA}, s[{(16,44)[j//2]}:{(16,44)[j//2]+3}], s74 offen offset:{3456*(j%2)}' for j in range(4)]
    if 'nowarm' in EXP: warm=[]
    wo=[(f's_add_u32 m0, s73, {1024*j}',f'buffer_load_dwordx4 v{VW+j%5}, s[12:15], s{70+j//5} offen lds') for j in range(13)]
    if 'noffn' in EXP: ffn=[]
    if 'xwo' in EXP: wo=[]
    cur=[0]
    def dmaA():
        i=cur[0]
        if rounds[0]<20: k(f's_add_u32 m0, s31, {8192*rounds[0]}')
        elif i>=20 and wo: k(wo[0][0])
    def dmaB():
        i=cur[0]
        if rounds[0]<20:
            k(f'buffer_load_dwordx4 v{VD}, s[20:23], s{50+rounds[0]} offen lds'); vm.append(('r',rounds[0])); rounds[0]+=1
        elif i>=20 and wo: k(wo.pop(0)[1])
        elif warm: k(warm.pop(0)); vm.append(('w',0))
        elif i>=14 and ffn: k(ffn.pop(0))
    def vmw(nr):
        idx=max(j for j,e in enumerate(vm) if e==('r',nr-1))
        return len(vm)-1-idx
    def off(i,base,extra):
        g=i//12
        return base[g],(i-12*g)*5120+extra
    def rdKL(i):
        L=[]
        a,o=off(i,AK,0); L.append(f'ds_read_b128 v[{KA}:{KA+3}], v{a} offset:{o}')
        a,o=off(i,AK,2560); L.append(f'ds_read_b128 v[{KB}:{KB+3}], v{a} offset:{o}')
        a,o=off(i,AT,0); L.append(f'ds_read_b64 v[{KT}:{KT+1}], v{a} offset:{o}')
        return L
    def rdK(i):
        for l in rdKL(i): k(l)
    def rdVL(i):
        L=[]
        for g in range(4):
            a,o=off(i,AV,(g//2)*2560+(g%2)*640); r=V[i%2]+4*g
            L.append(f'ds_read_b128 v[{r}:{r+3}], v{a} offset:{o}')
        return L
    def rdV(i):
        k('s_mov_b64 exec, s[40:41]')
        for l in rdVL(i): k(l)
        k('s_mov_b64 exec, -1')
    def qk(which,i):
        s=S[i%2]
        if which==0: k(f'v_mfma_f32_32x32x16_bf16 v[{s}:{s+15}], v[{KA}:{KA+3}], v[{QM}:{QM+3}], 0')
        if which==1: k(f'v_mfma_f32_32x32x16_bf16 v[{s+16}:{s+31}], v[{KB}:{KB+3}], v[{QM}:{QM+3}], 0')
        if which==2: k(f'v_mfma_f32_32x32x4_2b_bf16 v[{s}:{s+31}], v[{KT}:{KT+1}], v[{QT}:{QT+1}], v[{s}:{s+31}]')
    def pv(g,i,first=False):
        r=V[i%2]+4*g;p=P+4*g
        k(f'v_mfma_f32_32x32x16_bf16 v[{O}:{O+15}], v[{r}:{r+3}], v[{p}:{p+3}], '+('0' if first else f'v[{O}:{O+15}]'))
    def need_rounds(i):
        return min(20,-(-((2*(i+2)+2)*2560)//8192))
    k(f's_waitcnt vmcnt({vmw(2)})\ns_barrier')
    k.prof_mark(0)
    if PROF: k('s_waitcnt lgkmcnt(0)')
    have=2
    rdK(0)
    k('s_waitcnt lgkmcnt(0)')
    qk(0,0);qk(1,0)
    qk(2,0)
    rdK(1);rdV(0)
    NI=32
    bar_at={1:4,4:10,14:20,20:None}
    if 'nobar' in EXP: del bar_at[20]
    for i in range(NI):
        cur[0]=i
        s=S[i%2]
        def e(j): k(f'v_exp_f32 v{s+j}, v{s+j}')
        def c(g,j): k(f'v_cvt_pk_bf16_f32 v{P+4*g+j}, v{s+8*g+2*j}, v{s+8*g+2*j+1}')
        nxt=i+1<NI
        RK=rdKL(i+2) if i+2<NI else ['','','']
        RV=rdVL(i+1) if nxt else None
        e(0);e(1)
        if i>0: pv(3,i-1)
        if i in bar_at:
            if bar_at[i]: k(f's_waitcnt vmcnt({vmw(bar_at[i])}) lgkmcnt(0)\ns_barrier'); have=bar_at[i]
            else: k('s_waitcnt lgkmcnt(0)\ns_barrier')
        else: k('s_waitcnt lgkmcnt(0)')
        if i+2<NI: assert have>=need_rounds(i),(i,have,need_rounds(i))
        e(2);e(3);e(4);e(5)
        if nxt: qk(0,i+1)
        k(RK[0])
        e(6);e(7)
        for j in range(4): c(0,j)
        e(8)
        if nxt: qk(1,i+1)
        k(RK[1])
        e(9);e(10);e(11);e(12)
        if nxt: k('s_mov_b64 exec, s[40:41]')
        pv(0,i,i==0)
        if nxt:
            for l in RV: k(l)
            k('s_mov_b64 exec, -1')
        e(13);e(14);e(15)
        for j in range(4): c(1,j)
        if nxt: qk(2,i+1)
        k(RK[2])
        for j in range(16,24): e(j)
        dmaA()
        pv(1,i)
        dmaB()
        for j in range(4): c(2,j)
        e(24);e(25)
        dmaA()
        pv(2,i)
        dmaB()
        for j in range(26,32): e(j)
        for j in range(4): c(3,j)
    assert not wo and not ffn
    pv(3,NI-1)
    finA=k.newlabel('finA');slow=k.newlabel('slow')
    k(f'''v_max3_f32 v{T}, |v{O}|, |v{O+1}|, |v{O+2}|
    v_max3_f32 v{T+1}, |v{O+3}|, |v{O+4}|, |v{O+5}|
    v_max3_f32 v{T+2}, |v{O+6}|, |v{O+7}|, |v{O+8}|
    v_max3_f32 v{T+3}, |v{O+9}|, |v{O+10}|, |v{O+11}|
    s_mov_b32 s4, 0x21800000
    s_mov_b32 s5, 0x5d800000
    s_mov_b32 s6, 0x7b800000
    v_max3_f32 v{T}, v{T}, v{T+1}, v{T+2}
    v_cmp_le_f32 s[8:9], s4, v{O+12}
    v_max_f32 v{T}, v{T}, v{T+3}
    v_cmp_ge_f32 s[10:11], s5, v{O+12}
    v_cmp_gt_f32 vcc, s6, v{T}
    s_and_b64 s[8:9], s[8:9], s[10:11]
    s_and_b64 s[8:9], s[8:9], vcc
    s_cmp_eq_u64 s[8:9], -1''')
    if 'forceslow' in EXP: k(f's_branch {slow}')
    else: k(f's_cbranch_scc0 {slow}')
    k.label(finA)
    k(f'v_rcp_f32 v{T}, v{O+12}')
    for j in range(12): k(f'v_mul_f32 v{O+j}, v{O+j}, v{T}')
    for j in range(6): k(f'v_cvt_pk_bf16_f32 v{O+j}, v{O+2*j}, v{O+2*j+1}')
    for j in range(6): k(f'v_min_u32 v{O+j}, -2, v{O+j}')
    k(f'''buffer_store_dwordx4 v[{O}:{O+3}], v{VD}, s[20:23], s37 offen sc1
    s_mov_b64 exec, 0xffffffff
    buffer_store_dwordx2 v[{O+4}:{O+5}], v{VD}, s[20:23], s38 offen sc1
    s_mov_b64 exec, -1''')
    k.prof_mark(1)
    OF=10;ACC=50;WF=70;VM=110;VT=111;E=112;FP=120;VO=118
    k(f'''s_and_b32 s27, s26, 3             ; tt
    s_lshr_b32 s28, s26, 2            ; kh
    v_lshrrev_b32 v2, 4, v{LANE}
    v_lshlrev_b32 v2, 9, v2
    v_and_b32 v3, 15, v{LANE}
    v_lshl_add_u32 v2, v3, 4, v2
    s_and_b32 s3, s27, 1
    s_lshl_b32 s3, s3, 8
    v_add_u32 v{VO}, s3, v2
    s_lshl_b32 s29, s24, 1
    s_lshr_b32 s3, s27, 1
    s_add_u32 s29, s29, s3
    s_mul_i32 s29, s29, 40960
    s_add_u32 s29, s29, {OOFF}
    s_lshl_b32 s30, s28, 14
    s_add_u32 s30, s30, s29
    s_add_u32 s31, s30, 4096
    s_add_u32 s32, s30, 8192
    s_add_u32 s33, s30, 12288
    s_lshl_b32 s34, s28, 12
    s_add_u32 s34, s34, s29
    s_add_u32 s34, s34, 32768''')
    side=[]
    side+=f'''v_lshrrev_b32 v3, 3, v{TID}
    v_and_b32 v4, 7, v{TID}
    v_lshlrev_b32 v{E+3}, 4, v3
    v_lshl_add_u32 v{E+4}, v4, 10, v{E+3}
    v_mul_u32_u24 v{E+1}, 336, v3
    v_mul_u32_u24 v5, 40, v4
    v_add_u32 v{E+1}, v{E+1}, v5
    v_add_u32 v{E+1}, 102400, v{E+1}
    v_lshrrev_b32 v3, 4, v{LANE}
    v_bfe_u32 v4, v{LANE}, 2, 2
    v_and_b32 v5, 3, v{LANE}
    v_lshrrev_b32 v6, 1, v3
    v_and_b32 v7, 1, v3
    v_mul_u32_u24 v8, 20, v6
    v_lshl_add_u32 v8, v7, 2, v8
    v_add_u32 v8, v8, v4
    v_mul_u32_u24 v8, 160, v8
    v_lshl_add_u32 v8, v5, 3, v8
    s_mul_i32 s3, s28, {8*6400}
    v_add_u32 v{VM}, s3, v8
    v_mul_u32_u24 v8, 80, v6
    v_mul_u32_u24 v9, 40, v7
    v_add3_u32 v8, v8, v9, v4
    v_add_u32 v8, 16, v8
    v_mul_u32_u24 v8, 160, v8
    v_lshl_add_u32 v8, v5, 3, v8
    s_mul_i32 s3, s28, {2*25600}
    v_add_u32 v{VT}, s3, v8
    v_and_b32 v4, 15, v{LANE}
    s_lshl_b32 s3, s27, 4
    v_add_u32 v4, s3, v4
    v_mul_u32_u24 v4, 336, v4
    v_lshl_add_u32 v4, v3, 4, v4
    s_mul_i32 s3, s28, {64*336}
    s_add_u32 s3, s3, 102400
    v_add_u32 v{E+2}, s3, v4'''.split('\n')
    side2=[f'v_lshlrev_b32 v0, 16, v{WA}',f'v_and_b32 v1, 0xffff0000, v{WA}']
    for i in range(1,5):
        side2+=[f'v_lshlrev_b32 v2, 16, v{WA+i}',f'v_and_b32 v3, 0xffff0000, v{WA+i}','v_add_f32 v0, v0, v2','v_add_f32 v1, v1, v3']
    side2+=['v_add_f32 v0, v0, v1']
    for m in ('quad_perm:[1,0,3,2] row_mask:0xf','quad_perm:[2,3,0,1] row_mask:0xf','row_half_mirror row_mask:0xf','row_mirror row_mask:0xf','row_bcast:15 row_mask:0xa','row_bcast:31 row_mask:0xc'):
        side2+=[f'v_add_f32_dpp v0, v0, v0 {m} bank_mask:0xf']
    side2+=['v_readlane_b32 s57, v0, 63','s_mov_b32 s58, 0x05040100','s_mov_b32 s59, 0x07060302']
    for q in range(2):
        b=FW+8*q
        for i in range(4): side2+=[f'v_perm_b32 v{FP+2*i}, v{b+4+i}, v{b+i}, s58',f'v_perm_b32 v{FP+2*i+1}, v{b+4+i}, v{b+i}, s59']
        for i in range(8): side2+=[f'v_mov_b32 v{b+i}, v{FP+i}']
    for p in range(4): side2+=[f'v_perm_b32 v{DW+8+2*p}, v{DW+2*p+1}, v{DW+2*p}, s58',f'v_perm_b32 v{DW+9+2*p}, v{DW+2*p+1}, v{DW+2*p}, s59']
    side2+=[f'v_lshrrev_b32 v2, 3, v{TID}',f'v_mul_u32_u24 v2, 13824, v2',f'v_and_b32 v3, 7, v{TID}',f'v_lshl_add_u32 v{DW}, v3, 3, v2']
    for l in side: k(l)
    k(f's_waitcnt vmcnt({0 if "ow0" in EXP else 2})')
    for l in side2: k(l)
    k('s_barrier')
    k.prof_mark(2)
    def oload(s):
        if s<8: return f'buffer_load_dwordx4 v[{OF+4*s}:{OF+4*s+3}], v{VO}, s[20:23], s{30+s//2} offen offset:{2048*(s%2)} sc1'
        return f'buffer_load_dwordx4 v[{OF+4*s}:{OF+4*s+3}], v{VO}, s[20:23], s34 offen offset:{2048*(s-8)} sc1'
    for s in range(10): k(oload(s))
    def rd(s,b):
        L=[]
        for c in range(5):
            w=WF+20*b+4*c
            if s<8: a,o1,o2=VM,s*6400+32*c,s*6400+32*c+1280
            else: a,o1,o2=VT,(s-8)*25600+32*c,(s-8)*25600+32*c+3200
            L.append(f'ds_read_b64_tr_b16 v[{w}:{w+1}], v{a} offset:{o1}')
            L.append(f'ds_read_b64_tr_b16 v[{w+2}:{w+3}], v{a} offset:{o2}')
        return L
    if PROF: k('s_waitcnt lgkmcnt(0)')
    for l in rd(0,0): k(l)
    chk=k.newlabel('chk');ook=k.newlabel('ook')
    k.label(chk)
    k('s_waitcnt vmcnt(0)')
    for s in range(10): k(f'v_max3_u32 v{ACC+s}, v{OF+4*s}, v{OF+4*s+1}, v{OF+4*s+2}')
    for s in range(10): k(f'v_max_u32 v{ACC+s}, v{ACC+s}, v{OF+4*s+3}')
    k(f'''v_max3_u32 v0, v{ACC}, v{ACC+1}, v{ACC+2}
    v_max3_u32 v1, v{ACC+3}, v{ACC+4}, v{ACC+5}
    v_max3_u32 v2, v{ACC+6}, v{ACC+7}, v{ACC+8}
    v_max3_u32 v0, v0, v1, v{ACC+9}
    v_max_u32 v0, v0, v2
    v_cmp_eq_u32 vcc, -1, v0
    s_cbranch_vccz {ook}
    s_sub_u32 s{ST}, s{ST}, 1
    s_cbranch_scc1 {end}''')
    for s in range(10):
        sk=k.newlabel('sk')
        k(f'v_cmp_eq_u32 vcc, -1, v{ACC+s}\ns_cbranch_vccz {sk}\n'+oload(s))
        k.label(sk)
    k(f's_branch {chk}')
    k.label(ook)
    k.prof_mark(3)
    if PROF: k('s_waitcnt lgkmcnt(0)')
    for s in range(10):
        b=s%2
        R=rd(s+1,1-b) if s<9 else ['']*10
        for c in range(5):
            w=WF+20*b+4*c;a=ACC+4*c
            k(f's_waitcnt lgkmcnt({(8-2*c)+(2*c if s<9 else 0)})')
            k(f'v_mfma_f32_16x16x32_bf16 v[{a}:{a+3}], v[{w}:{w+3}], v[{OF+4*s}:{OF+4*s+3}], '+('0' if s==0 else f'v[{a}:{a+3}]'))
            k(R[2*c]);k(R[2*c+1])
    for c in range(5):
        k(f'ds_write_b128 v{E+2}, v[{ACC+4*c}:{ACC+4*c+3}] offset:{64*c}')
    k('s_waitcnt lgkmcnt(0)\ns_barrier')
    for h in range(2):
        for i in range(5):
            k(f'ds_read_b64 v[{10*h+2*i}:{10*h+2*i+1}], v{E+1} offset:{h*64*336+8*i}')
    k(f's_lshl_b32 s37, s24, 13\ns_add_u32 s37, s37, {STATS}\ns_lshl_b32 s38, s25, 10\ns_add_u32 s38, s38, s37')
    k(f's_add_u32 s35, s37, {STATSB-STATS}\ns_add_u32 s36, s38, {STATSB-STATS}')
    k('s_waitcnt lgkmcnt(0)')
    for i in range(10): k(f'v_add_f32 v{i}, v{i}, v{10+i}')
    HP=24;S1=30
    for i in range(5):
        k(f'''v_cvt_pk_bf16_f32 v{10+i}, v{2*i}, v{2*i+1}
        v_lshlrev_b32 v20, 16, v{X+i}
        v_and_b32 v21, 0xffff0000, v{X+i}
        v_lshlrev_b32 v{2*i}, 16, v{10+i}
        v_and_b32 v{2*i+1}, 0xffff0000, v{10+i}
        v_add_f32 v{2*i}, v{2*i}, v20
        v_add_f32 v{2*i+1}, v{2*i+1}, v21
        v_cvt_pk_bf16_f32 v{HP+i}, v{2*i}, v{2*i+1}
        v_lshlrev_b32 v{2*i}, 16, v{HP+i}
        v_and_b32 v{2*i+1}, 0xffff0000, v{HP+i}''')
        if i==0:
            k(f'''v_add_f32 v{S1}, v0, v1
            v_dot2_f32_bf16 v{S1+1}, v{HP}, v{HP}, 0
            v_dot2_f32_bf16 v{S1+2}, v{HP}, v{WR}, 0''')
        else:
            k(f'''v_add_f32 v22, v{2*i}, v{2*i+1}
            v_dot2c_f32_bf16 v{S1+1}, v{HP+i}, v{HP+i}
            v_dot2c_f32_bf16 v{S1+2}, v{HP+i}, v{WR+i}
            v_add_f32 v{S1}, v{S1}, v22''')
    k(f'v_mov_b32 v{S1+3}, 0')
    red8(k,[S1,S1+1,S1+2])
    for i in range(3): k(f'v_min_u32 v{S1+i}, -2, v{S1+i}')
    def stst(so,fl):
        k(f'''s_mov_b32 exec_lo, 0x01010101
        s_mov_b32 exec_hi, 0x01010101
        buffer_store_dwordx4 v[{S1}:{S1+3}], v{E+3}, s[20:23], s{so} offen{fl}
        s_mov_b64 exec, -1''')
    Q=34
    ck=f'v_max3_u32 v{Q+3}, v{Q}, v{Q+1}, v{Q+2}\nv_cmp_eq_u32 vcc, -1, v{Q+3}'
    k.prof_mark(4)
    if 'nodual' in EXP:
        stst(36,' sc1')
        poll(k,f'buffer_load_dwordx3 v[{Q}:{Q+2}], v{E+4}, s[20:23], s35 offen sc1',ck,end)
    else:
        stst(38,'')
        pa=k.newlabel('pa');pb=k.newlabel('pb');d1=k.newlabel('d1');d2=k.newlabel('d2')
        k('s_mov_b32 s3, 12')
        k.label(pa)
        k(f'buffer_load_dwordx3 v[{Q}:{Q+2}], v{E+4}, s[20:23], s37 offen sc1\ns_waitcnt vmcnt(0)\n{ck}')
        k(f's_cbranch_vccz {d1}\ns_sub_u32 s3, s3, 1\ns_cbranch_scc0 {pa}')
        stst(36,' sc1')
        poll(k,f'buffer_load_dwordx3 v[{Q}:{Q+2}], v{E+4}, s[20:23], s35 offen sc1',ck,end)
        k(f's_branch {d2}')
        k.label(d1)
        stst(36,' sc1')
        k.label(d2)
    if 'hdbg' in EXP:
        k(f'''s_add_u32 s3, s43, {HOFF}
        buffer_store_dwordx4 v[{HP}:{HP+3}], v{XO}, s[20:23], s3 offen
        buffer_store_dword v{HP+4}, v{XO}, s[20:23], s3 offen offset:16''')
    k.prof_mark(5)
    red8(k,[Q,Q+1,Q+2])
    k(f'''s_mov_b32 s3, 0x3acccccd
    v_mul_f32 v{Q}, s3, v{Q}                  ; mean
    v_mul_f32 v{Q+1}, s3, v{Q+1}
    v_fma_f32 v{Q+1}, -v{Q}, v{Q}, v{Q+1}
    v_max_f32 v{Q+1}, 0, v{Q+1}''')
    rbf(k,Q+1); k(f'v_add_f32 v{Q+1}, 0x3727c5ac, v{Q+1}'); rbf(k,Q+1)
    k(f'v_sqrt_f32 v{Q+1}, v{Q+1}'); rbf(k,Q); rbf(k,Q+1)
    k(f'''v_rcp_f32 v{Q+1}, v{Q+1}
    v_fma_f32 v{Q+2}, -v{Q}, s57, v{Q+2}
    s_lshl_b32 s39, s24, 6
    v_lshrrev_b32 v{Q+4}, 3, v{TID}
    v_add_u32 v{Q+4}, s39, v{Q+4}
    v_mul_f32 v{Q+2}, v{Q+2}, v{Q+1}
    v_sub_u32 v{Q+5}, 0x7ff, v{Q+4}
    v_cvt_pk_bf16_f32 v{Q+2}, v{Q+2}, v{Q+2}
    v_ashrrev_i32 v{Q+3}, 31, v{Q+2}
    v_or_b32 v{Q+3}, 0x80000000, v{Q+3}
    v_xor_b32 v{Q+2}, v{Q+2}, v{Q+3}
    v_and_b32 v{Q+2}, 0xffff0000, v{Q+2}
    v_or_b32 v{Q+2}, v{Q+2}, v{Q+5}              ; key
    v_lshrrev_b32 v20, 1, v{TID}
    s_mov_b32 exec_lo, 0x01010101
    s_mov_b32 exec_hi, 0x01010101
    ds_write_b32 v20, v{Q+2} offset:1024         ; 64 keys
    s_mov_b64 exec, -1
    v_lshlrev_b32 v20, 2, v{LANE}''')
    HN=40;OU=46
    for i in range(5):
        k(f'''v_sub_f32 v22, v{2*i}, v{Q}
        v_sub_f32 v21, v{2*i+1}, v{Q}
        v_cvt_pk_bf16_f32 v21, v22, v21
        v_lshlrev_b32 v22, 16, v21
        v_and_b32 v21, 0xffff0000, v21
        v_mul_f32 v22, v22, v{Q+1}
        v_mul_f32 v21, v21, v{Q+1}
        v_cvt_pk_bf16_f32 v{HN+i}, v22, v21''')
        if i==1: k(f's_waitcnt lgkmcnt(0)\ns_barrier\nds_read_b32 v23, v20 offset:1024')
    k('s_waitcnt lgkmcnt(0)')
    for m in ('quad_perm:[1,0,3,2] row_mask:0xf','quad_perm:[2,3,0,1] row_mask:0xf','row_half_mirror row_mask:0xf','row_mirror row_mask:0xf'):
        k(f'v_max_u32_dpp v23, v23, v23 {m} bank_mask:0xf')
    k(f'''v_readlane_b32 s60, v23, 0
    v_readlane_b32 s61, v23, 16
    v_readlane_b32 s62, v23, 32
    v_readlane_b32 s63, v23, 48
    s_lshl_b32 s64, s25, 8
    s_add_u32 s64, s64, {KEYS}
    s_lshl_b32 s3, s24, 2
    s_add_u32 s3, s3, s64
    s_max_u32 s60, s60, s61
    s_max_u32 s62, s62, s63
    s_max_u32 s60, s60, s62
    v_mov_b32 v23, s60
    s_cmp_eq_u32 s26, 0
    s_cselect_b64 exec, 1, 0
    buffer_store_dword v23, off, s[20:23], s3 sc1
    s_mov_b64 exec, -1''')
    for i in range(5): k(f'v_min_u32 v{HP+i}, -2, v{HP+i}\nv_min_u32 v{HN+i}, -2, v{HN+i}')
    nc=k.newlabel('nc')
    k(f'''v_cmp_eq_u32 vcc, s60, v{Q+2}
    s_mul_i32 s39, s24, 2560
    s_add_u32 s39, s39, s42
    s_add_u32 s39, s39, {CAND}
    s_cbranch_vccz {nc}
    s_mov_b64 exec, vcc
    buffer_store_dwordx4 v[{HN}:{HN+3}], v{CG}, s[20:23], s39 offen sc1
    buffer_store_dword v{HN+4}, v{CG}, s[20:23], s39 offen offset:16 sc1
    buffer_store_dwordx4 v[{HP}:{HP+3}], v{CG}, s[20:23], s39 offen offset:1280 sc1
    buffer_store_dword v{HP+4}, v{CG}, s[20:23], s39 offen offset:1296 sc1
    s_mov_b64 exec, -1''')
    k.label(nc)
    for i in range(5):
        k(f'''v_lshlrev_b32 v20, 16, v{HN+i}
        v_and_b32 v21, 0xffff0000, v{HN+i}
        v_add_f32 v20, v20, v{2*i}
        v_add_f32 v21, v21, v{2*i+1}
        v_cvt_pk_bf16_f32 v{OU+i}, v20, v21''')
    w0d=k.newlabel('w0d')
    k(f's_cmp_lg_u32 s26, 0\ns_cbranch_scc1 {w0d}')
    k(f'v_and_b32 v20, 31, v{LANE}\nv_lshlrev_b32 v20, 2, v20')
    KY=52
    poll(k,f'buffer_load_dword v{KY}, v20, s[20:23], s64 offen sc1',f'v_cmp_eq_u32 vcc, -1, v{KY}',end)
    for m in ('quad_perm:[1,0,3,2] row_mask:0xf','quad_perm:[2,3,0,1] row_mask:0xf','row_half_mirror row_mask:0xf','row_mirror row_mask:0xf'):
        k(f'v_max_u32_dpp v{KY}, v{KY}, v{KY} {m} bank_mask:0xf')
    k(f'''v_readlane_b32 s60, v{KY}, 0
    v_readlane_b32 s61, v{KY}, 16
    v_add_u32 v21, 1024, v{VD}
    v_add_u32 v22, 2048, v{VD}
    v_mov_b32 v23, 0xffff
    s_max_u32 s60, s60, s61
    s_and_b32 s61, s60, 0x7ff
    s_sub_u32 s61, 0x7ff, s61
    s_lshr_b32 s62, s61, 6
    s_mul_i32 s62, s62, 2560
    s_add_u32 s62, s62, {CAND}
    v_min_u32 v22, 2544, v22''')
    k.prof_mark(6)
    poll(k,f'''buffer_load_dwordx4 v[{KY}:{KY+3}], v{VD}, s[20:23], s62 offen sc1
    buffer_load_dwordx4 v[{KY+4}:{KY+7}], v21, s[20:23], s62 offen sc1
    buffer_load_dwordx4 v[{KY+8}:{KY+11}], v22, s[20:23], s62 offen sc1''',
    f'''v_max3_u32 v23, v{KY}, v{KY+1}, v{KY+2}
    v_max3_u32 v23, v23, v{KY+3}, v{KY+4}
    v_max3_u32 v23, v23, v{KY+5}, v{KY+6}
    v_max3_u32 v23, v23, v{KY+7}, v{KY+8}
    v_max3_u32 v23, v23, v{KY+9}, v{KY+10}
    v_max_u32 v23, v23, v{KY+11}
    v_cmp_eq_u32 vcc, -1, v23''',end)
    k(f'''ds_write_b128 v{VD}, v[{KY}:{KY+3}] offset:2048
    ds_write_b128 v21, v[{KY+4}:{KY+7}] offset:2048
    ds_write_b128 v22, v[{KY+8}:{KY+11}] offset:2048
    v_mov_b32 v23, s60
    ds_write_b32 v20, v23 offset:1536
    s_waitcnt lgkmcnt(0)''')
    k.label(w0d)
    k(f'''s_barrier
    v_lshlrev_b32 v20, 2, v{TID}
    v_mov_b32 v23, 0
    ds_read_b32 v21, v20 offset:2048
    ds_read_b32 v23, v23 offset:1536''')
    def outst():
        k(f'''s_mov_b64 exec, s[66:67]
        buffer_store_dwordx4 v[{OU}:{OU+3}], v{XO}, s[48:51], s43 offen
        buffer_store_dword v{OU+4}, v{XO}, s[48:51], s43 offen offset:16
        s_mov_b64 exec, -1''')
    def winner():
        k(f'''v_readfirstlane_b32 s60, v23
        s_and_b32 s61, s60, 0x7ff
        s_sub_u32 s61, 0x7ff, s61
        v_cmp_ne_u32 s[66:67], s61, v{Q+4}''')
    dn2=k.newlabel('dn2');bar=k.newlabel('bar');fin=k.newlabel('fin')
    A=60
    k(f's_cmp_ge_u32 s2, 216\ns_cbranch_scc1 {dn2}')
    k(f's_cmp_ge_u32 s26, 5\ns_cbranch_scc1 {bar}')
    k('s_waitcnt lgkmcnt(1)')
    for i in range(16): k(f'v_dot2_f32_bf16 v{A+i}, v{FW+i}, v21, 0')
    reduce16(k,A)
    k(f'''v_lshlrev_b32 v20, 3, v{LANE}
    s_lshl_b32 s3, s26, 2
    v_add_u32 v20, s3, v20
    s_mov_b32 exec_lo, 0x11111111
    s_mov_b32 exec_hi, 0x11111111
    ds_write_b32 v20, v{A}
    s_mov_b64 exec, -1''')
    k.label(bar)
    k(f's_waitcnt lgkmcnt(0)\ns_barrier\ns_cmp_ge_u32 s26, 5\ns_cbranch_scc1 {fin}')
    k(f'''v_lshlrev_b32 v20, 5, v{LANE}
    s_mov_b64 exec, 0xff
    ds_read_b128 v[{A}:{A+3}], v20
    ds_read_b32 v{A+4}, v20 offset:16
    ds_read_b128 v[{A+8}:{A+11}], v20 offset:256
    ds_read_b32 v{A+12}, v20 offset:272
    s_lshl_b32 s3, s74, 2
    s_add_u32 s3, s3, {YP}
    s_waitcnt lgkmcnt(0)''')
    for b in (A,A+8):
        k(f'v_add_f32 v{b}, v{b}, v{b+1}\nv_add_f32 v{b+2}, v{b+2}, v{b+3}\nv_add_f32 v{b}, v{b}, v{b+4}\nv_add_f32 v{b}, v{b}, v{b+2}')
        rbf(k,b)
    k(f'''v_mul_f32 v{A+1}, 0xbfb8aa3b, v{A}
    v_exp_f32 v{A+1}, v{A+1}
    v_add_f32 v{A+1}, 1.0, v{A+1}
    v_rcp_f32 v{A+1}, v{A+1}
    v_mul_f32 v{A}, v{A}, v{A+1}''')
    rbf(k,A)
    k(f'''v_mul_f32 v{A}, v{A}, v{A+8}
    v_mov_b32_dpp v{A+1}, v{A} quad_perm:[1,0,3,2] row_mask:0xf bank_mask:0xf
    v_cvt_pk_bf16_f32 v{A}, v{A}, v{A+1}
    s_mov_b64 exec, -1
    v_readlane_b32 s4, v{A}, 0
    v_readlane_b32 s5, v{A}, 2
    v_readlane_b32 s6, v{A}, 4
    v_readlane_b32 s7, v{A}, 6
    v_dot2_f32_bf16 v{A+2}, v{DW+8}, s4, 0
    v_dot2_f32_bf16 v{A+3}, v{DW+9}, s4, 0
    v_dot2_f32_bf16 v{A+4}, v{DW+10}, s5, 0
    v_dot2_f32_bf16 v{A+5}, v{DW+11}, s5, 0
    v_dot2_f32_bf16 v{A+2}, v{DW+12}, s6, v{A+2}
    v_dot2_f32_bf16 v{A+3}, v{DW+13}, s6, v{A+3}
    v_dot2_f32_bf16 v{A+4}, v{DW+14}, s7, v{A+4}
    v_dot2_f32_bf16 v{A+5}, v{DW+15}, s7, v{A+5}
    v_add_f32 v{A+2}, v{A+2}, v{A+4}
    v_add_f32 v{A+3}, v{A+3}, v{A+5}
    v_min_u32 v{A+2}, -2, v{A+2}
    v_min_u32 v{A+3}, -2, v{A+3}
    buffer_store_dwordx2 v[{A+2}:{A+3}], v{DW}, s[20:23], s3 offen sc1''')
    k.label(fin)
    winner()
    outst()
    k.prof_mark(7)
    k.prof_end(1,20,230)
    k('s_endpgm')
    k.label(dn2)
    k(f'''v_lshlrev_b32 v20, 1, v{LANE}
    v_add_u32 v20, s74, v20
    ds_read_u16 v24, v20 offset:2048
    ds_read_u16 v25, v20 offset:{2048+1280}
    s_waitcnt lgkmcnt(0)''')
    winner()
    outst()
    k(f'''v_lshlrev_b32 v24, 16, v24
    v_lshlrev_b32 v25, 16, v25
    s_and_b32 s60, s60, 0xffff0000
    s_ashr_i32 s3, s60, 31
    s_not_b32 s3, s3
    s_or_b32 s3, s3, 0x80000000
    s_xor_b32 s60, s60, s3
    s_and_b32 s60, s60, 0xffff0000     ; r as f32
    v_mov_b32 v26, 0xbfb8aa3b
    v_mul_f32 v26, s60, v26
    v_exp_f32 v26, v26
    v_add_f32 v26, 1.0, v26
    v_rcp_f32 v26, v26''')
    rbf(k,26)
    k(f'''v_lshlrev_b32 v20, 4, v{TID}
    v_add_u32 v21, 8192, v20
    v_min_u32 v21, {13824-16}, v21
    v_mov_b32 v27, 352
    v_cmp_gt_u32 s[8:9], v27, v{TID}
    s_mul_i32 s3, s74, 432
    s_add_u32 s3, s3, {YP}
    v_and_b32 v22, 3, v{LANE}
    v_lshrrev_b32 v23, 4, v{LANE}
    v_lshl_add_u32 v22, v22, 2, v23
    v_lshlrev_b32 v22, 5, v22
    s_lshl_b32 s4, s26, 2
    v_add_u32 v22, s4, v22''')
    PRE=int(os.environ.get('APRE','0'))
    if PRE: k(f's_sleep {PRE}')
    poll(k,f'''buffer_load_dwordx4 v[{A}:{A+3}], v20, s[20:23], s3 offen sc1
    buffer_load_dwordx4 v[{A+4}:{A+7}], v21, s[20:23], s3 offen sc1''',
    f'''v_max3_u32 v23, v{A}, v{A+1}, v{A+2}
    v_max3_u32 v27, v{A+3}, v{A+4}, v{A+5}
    v_max3_u32 v23, v23, v{A+6}, v{A+7}
    v_max_u32 v23, v23, v27
    v_cmp_eq_u32 vcc, -1, v23''',end)
    k('s_mov_b64 exec, s[8:9]')
    for i in range(4): k(f'v_add_f32 v{A+i}, v{A+i}, v{A+4+i}')
    k(f'''s_mov_b64 exec, -1
    v_permlane32_swap_b32 v{A}, v{A+2}
    v_permlane32_swap_b32 v{A+1}, v{A+3}
    v_add_f32 v{A}, v{A}, v{A+2}
    v_add_f32 v{A+1}, v{A+1}, v{A+3}
    v_permlane16_swap_b32 v{A}, v{A+1}
    v_add_f32 v{A}, v{A}, v{A+1}
    v_add_f32_dpp v{A}, v{A}, v{A} row_ror:4 row_mask:0xf bank_mask:0xf
    v_add_f32_dpp v{A}, v{A}, v{A} row_ror:8 row_mask:0xf bank_mask:0xf
    s_mov_b32 exec_lo, 0x000f000f
    s_mov_b32 exec_hi, 0x000f000f
    ds_write_b32 v22, v{A}
    s_mov_b64 exec, -1
    s_waitcnt lgkmcnt(0)
    s_barrier
    s_cmp_lg_u32 s26, 0''')
    fin3=k.newlabel('fin3')
    k(f'''s_cbranch_scc1 {fin3}
    v_lshlrev_b32 v20, 5, v{LANE}
    s_mov_b64 exec, 0xffff
    ds_read_b128 v[{A}:{A+3}], v20
    ds_read_b128 v[{A+4}:{A+7}], v20 offset:16
    v_lshlrev_b32 v20, 1, v{LANE}
    s_mul_i32 s61, s61, 1280
    s_add_u32 s61, s61, s74
    s_waitcnt lgkmcnt(0)''')
    for i in (0,2,4,6): k(f'v_add_f32 v{A+i}, v{A+i}, v{A+i+1}')
    k(f'v_add_f32 v{A}, v{A}, v{A+2}\nv_add_f32 v{A+4}, v{A+4}, v{A+6}\nv_add_f32 v{A}, v{A}, v{A+4}')
    rbf(k,A)
    k(f'v_mul_f32 v{A}, v{A}, v26'); rbf(k,A)
    k(f'v_add_f32 v{A}, v{A}, v24'); rbf(k,A)
    k(f'''v_add_f32 v{A}, v{A}, v25
    v_cvt_pk_bf16_f32 v{A}, v{A}, v{A}
    buffer_store_short v{A}, v20, s[48:51], s61 offen''')
    k.label(fin3)
    k.prof_mark(7)
    k.prof_end(1,20,230)
    k('s_endpgm')
    k.label(slow)
    l1=k.newlabel('p1');l2=k.newlabel('p2')
    A0,M=T,T+3
    s=S[0]
    def ldK():
        k(f'''buffer_load_dwordx4 v[{KA}:{KA+3}], v{AK[0]}, s[20:23], s5 offen
        buffer_load_dwordx4 v[{KB}:{KB+3}], v{AK[0]}, s[20:23], s5 offen offset:2560
        buffer_load_dwordx2 v[{KT}:{KT+1}], v{AT[0]}, s[20:23], s5 offen''')
    k(f'v_mov_b32 v{M}, 0xff800000\ns_mov_b32 s4, 32\ns_mov_b32 s5, s30')
    k.label(l1)
    ldK()
    k('s_waitcnt vmcnt(0)')
    qk(0,0);qk(1,0);qk(2,0)
    k('s_add_u32 s5, s5, 5120')
    for j in range(16): k(f'v_max3_f32 v{M}, v{M}, v{s+2*j}, v{s+2*j+1}')
    k(f's_sub_u32 s4, s4, 1\ns_cmp_lg_u32 s4, 0\ns_cbranch_scc1 {l1}')
    k(f'''v_mov_b32 v{A0}, v{M}
    v_permlane32_swap_b32 v{A0}, v{M}
    v_max_f32 v{M}, v{M}, v{A0}''')
    for j in range(16): k(f'v_mul_f32 v{C+j}, -1.0, v{M}')
    for j in range(16): k(f'v_mov_b32 v{O+j}, 0')
    k(f's_mov_b32 s4, 32\ns_mov_b32 s5, s30')
    k.label(l2)
    ldK()
    k('s_mov_b64 exec, s[40:41]')
    for g in range(4):
        r=V[0]+4*g
        k(f'buffer_load_dwordx4 v[{r}:{r+3}], v{AV[0]}, s[20:23], s5 offen offset:{(g//2)*2560+(g%2)*640}')
    k('s_mov_b64 exec, -1\ns_waitcnt vmcnt(0)')
    k(f'v_mfma_f32_32x32x16_bf16 v[{s}:{s+15}], v[{KA}:{KA+3}], v[{QM}:{QM+3}], v[{C}:{C+15}]')
    k(f'v_mfma_f32_32x32x16_bf16 v[{s+16}:{s+31}], v[{KB}:{KB+3}], v[{QM}:{QM+3}], v[{C}:{C+15}]')
    qk(2,0)
    k('s_add_u32 s5, s5, 5120')
    for j in range(32): k(f'v_exp_f32 v{s+j}, v{s+j}')
    for g in range(4):
        for j in range(4): k(f'v_cvt_pk_bf16_f32 v{P+4*g+j}, v{s+8*g+2*j}, v{s+8*g+2*j+1}')
    for g in range(4): pv(g,0)
    k(f's_sub_u32 s4, s4, 1\ns_cmp_lg_u32 s4, 0\ns_cbranch_scc1 {l2}')
    k(f's_nop 15\ns_branch {finA}')
    k.label(end)
    k('s_endpgm')
    return k
```

```python
WS_BYTES=0x10000000
QOFF=0
KVOFF=0x280000
HOFF=0xA00000
OOFF=0xC80000
MISC=0xF00000
STATS=MISC
STATSB=MISC+0x40000
KEYS=MISC+0x80000
AOFF2=MISC+0x82000
CAND=MISC+0x84000
PF_BASE=OOFF
YP=MISC+0x98000
PF_BYTES=0x3A0000
PROFOFF=0x1100000
```

```python
import sys
sys.path.insert(0,'gen')
from asmlib import build
from k1 import gen_k1
OUT='sequential_preLN__mha_block__moe_arch_mod__prompt.s'
def main(out=OUT,verbose=False):
    L=[]
    k1=gen_k1(); k1.fix(verbose); L.append((k1,256,512,163840))
    try:
        from k5 import gen_k2
        k2=gen_k2(); k2.fix(verbose); L.append((k2,256,512,163840))
    except ImportError as e:
        print('skipping',e)
    for k,_,_,_ in L: print(k.name,'instrs',len(k.ins),'nops',k.nops,'maxv',k.maxv,'maxs',k.maxs)
    build(L,out)
if __name__=='__main__':
    main(verbose='-v' in sys.argv)
```
